```python
import torch

def _softmax(x, axis=-1):
    return torch.softmax(x, dim=axis)

def _gelu(x):
    return torch.nn.functional.gelu(x, approximate='tanh')

def _silu(x):
    return torch.nn.functional.silu(x)

def _sigmoid(x):
    return torch.sigmoid(x)

def _layernorm(x, axis=-1, eps=1e-05):
    m = x.mean(dim=axis, keepdim=True)
    v = x.var(dim=axis, keepdim=True, unbiased=False)
    return (x - m) / torch.sqrt(v + eps)

def _scatter_add(tgt, idx, src, axis=0):
    return tgt.clone().index_add_(axis, idx, src)

def _segment_sum(src, seg, n):
    out = torch.zeros((n,) + src.shape[1:], dtype=src.dtype)
    return out.index_add_(0, seg, src)

def _pad(x, pw):
    flat = tuple((v for pair in reversed(pw) for v in pair))
    return torch.nn.functional.pad(x, flat)
kernel_name = 'gather_scatter__molecular_angular_painn__graph'

def setup_inputs():

    _w = lambda a: (lambda t: t.to(torch.bfloat16) if t.is_floating_point() else t)(torch.as_tensor(a))
    N, deg, D = (25000, 16, 128)
    n_rbf = max(16, 4)
    E = N * deg
    cutoff = 5.0
    freqs = (torch.arange(1, n_rbf + 1) * torch.pi / cutoff).to(float)
    return {'sv': _w((lambda *s: torch.randn(*s, dtype=torch.bfloat16) * 0.4)(N, 4, D) * 0.3), 'pos': _w((lambda *s: torch.randn(*s, dtype=torch.bfloat16) * 3.2)(N, 3) * 1.2), 'src': _w((lambda lo, hi, *s: torch.randint(lo, hi, s))(0, N, E).to(torch.int64)), 'dst': _w((lambda lo, hi, *s: torch.randint(lo, hi, s))(0, N, E).to(torch.int64)), 'freqs': _w(freqs), 'w_phi1': _w((lambda *s: torch.randn(*s, dtype=torch.bfloat16) * 3.2)(D, D) / D ** 0.5), 'w_phi2': _w((lambda *s: torch.randn(*s, dtype=torch.bfloat16) * 3.2)(D, 3 * D) / D ** 0.5), 'w_rbf': _w((lambda *s: torch.randn(*s, dtype=torch.bfloat16) * 3.2)(n_rbf, 3 * D) / n_rbf ** 0.5)}

def reference(sv, pos, src, dst, freqs, w_phi1, w_phi2, w_rbf):
    N, _, D = sv.shape
    E = src.shape[0]
    PI, cutoff = (3.141592653589793, 5.0)
    s, v = (sv[:, 0, :].clone(), sv[:, 1:, :].clone())
    r_vec = pos[src] - pos[dst]
    d = torch.sqrt((r_vec * r_vec).sum(-1) + 1e-08)
    r_hat = r_vec / d[:, None]
    rbf = torch.sin(d[:, None] * freqs[None, :]) / d[:, None]
    fcut = 0.5 * (torch.cos(PI * d / cutoff) + 1.0)
    fcut = torch.where(d < cutoff, fcut, 0.0 * d)
    Wf = rbf @ w_rbf * fcut[:, None]
    phi = (_silu(s @ w_phi1) @ w_phi2)[src]
    m = phi * Wf
    m_s, m_vv, m_vr = (m[:, :D].clone(), m[:, D:2 * D].clone(), m[:, 2 * D:].clone())
    ds = _segment_sum(m_s, dst, N)
    dv_e = m_vv[:, None, :] * v[src] + m_vr[:, None, :] * r_hat[:, :, None]
    dv = _segment_sum(dv_e.reshape(E, 3 * D), dst, N).reshape(N, 3, D)
    return sv + torch.concatenate([ds[:, None, :], dv], axis=1)
```

```python
import re

REG_RE = re.compile(r'^(-|abs\(|-abs\(|\|)?([vas])(\d+|\[(\d+):(\d+)\])\)?\|?$')

def regs_of(tok):
    tok = tok.strip()
    if tok in ('vcc',): return [('s', 106), ('s', 107)]
    if tok == 'vcc_lo': return [('s', 106)]
    if tok == 'vcc_hi': return [('s', 107)]
    if tok == 'exec': return [('s', 126), ('s', 127)]
    if tok == 'exec_lo': return [('s', 126)]
    if tok == 'exec_hi': return [('s', 127)]
    if tok == 'm0': return [('s', 124)]
    m = REG_RE.match(tok)
    if not m: return []
    k = m.group(2)
    if m.group(4) is not None:
        return [(k, i) for i in range(int(m.group(4)), int(m.group(5)) + 1)]
    return [(k, int(m.group(3)))]

TRANS = ('v_exp_f32', 'v_log_f32', 'v_rcp_f32', 'v_rsq_f32', 'v_sqrt_f32', 'v_sin_f32', 'v_cos_f32', 'v_rcp_iflag_f32')
VCC = [('s', 106), ('s', 107)]
EXEC = [('s', 126), ('s', 127)]
M0 = [('s', 124)]

class Ins:
    __slots__ = ('text', 'op', 'kind', 'dst', 'src', 'mods', 'passes', 'srcA', 'srcB', 'srcC', 'data', 'is_label',
                 'target', 'lds', 'dpp', 'auto', 'lanesel', 'wide', 'opsel')
    def __init__(self, text):
        self.text = text
        self.dst = []; self.src = []; self.srcA = []; self.srcB = []; self.srcC = []; self.data = []
        self.passes = 0; self.is_label = False; self.target = None; self.lds = False; self.dpp = False
        self.lanesel = []; self.wide = False; self.opsel = False
        t = text.split(';')[0].strip()
        if t.endswith(':'):
            self.kind = 'label'; self.is_label = True; self.op = t[:-1]; return
        if t.startswith('.') or not t:
            self.kind = 'dir'; self.op = t; return
        parts = t.split(None, 1)
        op = parts[0]; self.op = op
        rest = parts[1] if len(parts) > 1 else ''
        ops = []; cur = ''; depth = 0
        for ch in rest:
            if ch in '[(': depth += 1
            if ch in '])': depth -= 1
            if ch == ',' and depth == 0: ops.append(cur.strip()); cur = ''
            else: cur += ch
        if cur.strip(): ops.append(cur.strip())
        mods = ''
        if ops:
            lp = ops[-1].split(None, 1)
            ops[-1] = lp[0]
            if len(lp) > 1: mods = lp[1]
        self.mods = mods
        R = [regs_of(o) for o in ops]
        base = re.sub(r'_(e32|e64|dpp|sdwa)$', '', op)
        if op.startswith('v_mfma'):
            self.kind = 'mfma'
            self.passes = 8 if '32x32x16' in op else (4 if ('16x16x32' in op or '16x16x16' in op) else None)
            assert self.passes, op
            self.dst = R[0]; self.srcA = R[1]; self.srcB = R[2]; self.srcC = R[3]
            self.src = R[1] + R[2] + R[3]
        elif op.startswith('v_'):
            self.kind = 'trans' if base in TRANS else 'valu'
            self.dpp = ('quad_perm' in mods or 'row_' in mods or 'wave_' in mods or op.endswith('_dpp'))
            self.opsel = ('dst_sel' in mods) or bool(re.search(r'op_sel:\[[01,]*1\]', mods) and base.startswith('v_cvt'))
            if base.startswith('v_cmpx'):
                self.dst = R[0] + EXEC; self.src = sum(R[1:], [])
            elif base in ('v_add_co_u32', 'v_sub_co_u32', 'v_subrev_co_u32', 'v_addc_co_u32', 'v_subb_co_u32', 'v_mad_u64_u32', 'v_div_scale_f32'):
                self.dst = R[0] + R[1]; self.src = sum(R[2:], [])
            elif base in ('v_permlane32_swap_b32', 'v_permlane16_swap_b32', 'v_swap_b32'):
                self.dst = R[0] + R[1]; self.src = R[0] + R[1]
            elif base == 'v_nop':
                pass
            else:
                self.dst = R[0]; self.src = sum(R[1:], [])
                if base in ('v_fmac_f32', 'v_writelane_b32', 'v_pk_fmac_f16', 'v_dot2c_f32_bf16') or self.dpp or 'dst_unused:UNUSED_PRESERVE' in mods:
                    self.src = self.src + R[0]
                if base in ('v_readlane_b32', 'v_writelane_b32'):
                    self.lanesel = R[2]
        elif op.startswith('ds_'):
            self.kind = 'ds'
            if op.startswith('ds_read') or '_rtn' in op or op.startswith('ds_bpermute') or op.startswith('ds_permute') or op.startswith('ds_swizzle'):
                self.dst = R[0]; self.src = sum(R[1:], [])
            else:
                self.src = sum(R, [])
        elif op.startswith('buffer_inv') or op.startswith('buffer_wbl2'):
            self.kind = 'vmem'
        elif op.startswith('buffer_') or op.startswith('global_'):
            self.kind = 'vmem'
            self.lds = bool(re.search(r'\blds\b', mods)) or '_lds_' in op
            if self.lds:
                self.src = sum(R, []) + M0
            elif '_load' in op:
                self.dst = R[0]; self.src = sum(R[1:], [])
            elif '_store' in op:
                if op.startswith('buffer_'): self.data = R[0]
                else: self.data = R[1]
                self.src = sum(R, [])
                self.wide = op.endswith('x3') or op.endswith('x4')
            else:
                raise ValueError('unsupported vmem ' + text)
        elif op.startswith('s_load') or op.startswith('s_buffer_load') or op in ('s_memtime', 's_memrealtime'):
            self.kind = 'smem'; self.dst = R[0]; self.src = sum(R[1:], [])
        elif op == 's_nop':
            self.kind = 'nop'
        elif op == 's_waitcnt':
            self.kind = 'wait'; self.mods = rest
        elif op in ('s_branch',) or op.startswith('s_cbranch'):
            self.kind = 'branch'; self.target = ops[0]
        elif op in ('s_endpgm',):
            self.kind = 'end'
        elif op in ('s_barrier', 's_setprio', 's_sleep'):
            self.kind = 'misc'
        elif op.startswith('s_'):
            self.kind = 'salu'
            if op.startswith('s_cmp') or op.startswith('s_bitcmp'):
                self.src = sum(R, [])
            else:
                self.dst = R[0]; self.src = sum(R[1:], [])
                if 'saveexec' in op:
                    self.dst = self.dst + EXEC; self.src = self.src + EXEC
                if op in ('s_addk_i32', 's_mulk_i32', 's_bitset1_b32', 's_bitset0_b32', 's_bitset1_b64'): self.src = self.src + R[0]
        else:
            raise ValueError('cannot parse ' + text)
    def states(self):
        if self.kind in ('label', 'dir'): return 0
        if self.kind == 'nop': return int(self.text.split(';')[0].split()[1], 0) + 1
        return 1

def inter(a, b):
    return bool(set(a) & set(b))

def need(p, c):
    n = 0
    pv = p.kind in ('valu', 'trans'); cv = c.kind in ('valu', 'trans')
    if pv:
        vd = [r for r in p.dst if r[0] != 's']; sd = [r for r in p.dst if r[0] == 's']
        if c.kind == 'mfma':
            if inter(vd, c.src): n = max(n, 2)
            if inter(sd, EXEC): n = max(n, 4)
        if cv:
            if p.kind == 'trans' and inter(vd, c.src): n = max(n, 1)
            if p.opsel and (inter(vd, c.src) or inter(vd, c.dst)): n = max(n, 1)
            if inter(sd, c.src): n = max(n, 2)
            if inter(sd, c.lanesel): n = max(n, 4)
            if c.op.startswith('v_div_fmas') and inter(sd, VCC): n = max(n, 4)
            if c.op.startswith(('v_readlane', 'v_readfirstlane')) and inter(vd, c.src): n = max(n, 1)
            if c.op.startswith(('v_readlane', 'v_readfirstlane', 'v_writelane', 'v_permlane')) and inter(sd, EXEC): n = max(n, 4)
            if c.dpp and inter(vd, c.src): n = max(n, 2)
            if c.dpp and inter(sd, EXEC): n = max(n, 5)
            if c.op.startswith('v_permlane') and inter(vd, c.src): n = max(n, 2)
        if c.kind == 'vmem' and inter(sd, c.src): n = max(n, 5)
    if p.kind == 'mfma':
        big = {4: 8, 8: 12}[p.passes]
        if c.kind == 'mfma':
            if inter(p.dst, c.srcA) or inter(p.dst, c.srcB): n = max(n, big)
            if inter(p.dst, c.srcC):
                if not (p.dst == c.srcC and p.op == c.op): n = max(n, big - 2)
            elif inter(p.dst, c.dst): n = max(n, big)
        elif cv or c.kind in ('ds', 'vmem'):
            if inter(p.dst, c.src) or inter(p.dst, c.dst): n = max(n, big)
            if cv and inter(p.srcC, c.dst): n = max(n, {4: 3, 8: 7}[p.passes])
    if p.kind == 'salu' and inter(p.dst, M0) and c.kind == 'vmem' and c.lds: n = max(n, 1)
    if p.kind == 'vmem' and p.wide:
        if inter(p.data, c.dst): n = max(n, 2 if (cv or c.kind == 'mfma') else 1)
    return n

class Prog:
    def __init__(self):
        self.ins = []
        self.auto_lgkm = True
        self.auto_vm = True
        self._uid = 0
    def I(self, text):
        for line in text.strip().split('\n'):
            line = line.strip()
            if not line or line.startswith(';'): continue
            i = Ins(line); i.auto = (self.auto_lgkm, self.auto_vm)
            self.ins.append(i)
    def L(self, name): self.I(name + ':')
    def uid(self, p='L'):
        self._uid += 1
        return f'{p}_{self._uid}'
    def insert_waits(self):
        out = []
        lg = []
        vm = []
        def retire(q, n):
            return [e for e in q if e[1] < n]
        for i in self.ins:
            if i.kind == 'dir':
                out.append(i); continue
            if i.kind == 'wait':
                m = re.search(r'lgkmcnt\((\d+)\)', i.mods)
                if m: lg = retire(lg, int(m.group(1)))
                m = re.search(r'vmcnt\((\d+)\)', i.mods)
                if m: vm = retire(vm, int(m.group(1)))
                out.append(i); continue
            if i.kind in ('label', 'branch', 'end'):
                for e in lg: e[2] = True
                for e in vm: e[2] = True
                if i.kind == 'end': lg = []; vm = []
                out.append(i); continue
            touched = set(i.src) | set(i.dst)
            w = []
            if i.auto[0]:
                hit = [e[1] for e in lg if touched & e[0]]
                if hit:
                    n = min(min(hit), 15); w.append(f'lgkmcnt({n})'); lg = retire(lg, n)
            if i.auto[1]:
                hit = [e[1] for e in vm if touched & e[0]]
                if hit:
                    n = min(min(hit), 63); w.append(f'vmcnt({n})'); vm = retire(vm, n)
            if w:
                x = Ins('s_waitcnt ' + ' '.join(w)); x.auto = i.auto; out.append(x)
            if i.kind == 'ds':
                for e in lg:
                    if not e[2]: e[1] += 1
                lg.append([set(i.dst) if i.auto[0] else set(), 0, False])
            if i.kind == 'smem':
                for e in lg: e[1] = 0; e[2] = True
                lg.append([set(i.dst), 0, True])
            if i.kind == 'vmem':
                for e in vm:
                    if not e[2]: e[1] += 1
                vm.append([set(i.dst) if i.auto[1] else set(), 0, False])
            out.append(i)
        self.ins = out
    def insert_nops(self):
        MAXD = 13
        total = 0
        ins = self.ins
        def build():
            j = {}
            for k, i in enumerate(ins):
                if i.kind == 'branch': j.setdefault(i.target, []).append(k)
            return j
        jumps = build()
        def preds(k):
            res = []
            if k > 0:
                p = ins[k - 1]
                if not (p.kind == 'end' or (p.kind == 'branch' and p.op == 's_branch')): res.append(k - 1)
            if ins[k].is_label: res += jumps.get(ins[k].op, [])
            return res
        k = 0
        while k < len(ins):
            c = ins[k]
            if c.kind in ('valu', 'trans', 'mfma', 'ds', 'vmem'):
                worst = 0
                stack = [(p, 0) for p in preds(k)]
                seen = set()
                while stack:
                    p, d = stack.pop()
                    if (p, d) in seen: continue
                    seen.add((p, d))
                    pi = ins[p]
                    if pi.kind in ('valu', 'trans', 'mfma', 'salu', 'vmem'):
                        n = need(pi, c) - d
                        if n > worst: worst = n
                    d2 = d + pi.states()
                    if d2 < MAXD:
                        for q in preds(p): stack.append((q, d2))
                if worst > 0:
                    x = Ins(f's_nop {worst - 1}'); x.auto = c.auto
                    ins.insert(k, x)
                    jumps = build()
                    total += worst
                    k += 1
            k += 1
        return total
    def text(self):
        o = []
        for i in self.ins:
            o.append(i.text if (i.is_label or i.kind == 'dir') else '    ' + i.text)
        return '\n'.join(o) + '\n'
```

```python
import struct
N = 25000; E = 400000
NPROD = 98; NCONS = 250; CELLCAP = 15
NPN = 160
NNODEWG = (N + NPN - 1) // NPN
K1_GRID = NPROD + NNODEWG
WS_CELLS = 0
WS_OVFCNT = NPROD * NCONS * 64
WS_OVF = 0x180000
WS_H = 0x400000
WS_WF = 0xB00000
K1_CNT = 150528
K1_LDS = K1_CNT + 1024
K1_SB = 32768
def f32hex(x): return '0x%08x' % struct.unpack('<I', struct.pack('<f', x))[0]
GRP = 4160
SLOT = 8 * GRP
K2_RBF = 4 * SLOT
CH = 16
K2_GEO = K2_RBF + CH * 1024
K2_SLOTS = K2_GEO + CH * 320
NSLOTS = 1600
K2_CNT = K2_SLOTS + NSLOTS * 4
K2_LDS = K2_CNT + 64
NULLREC = N | (127 << 24)
```

```python
from asmlib import *
from consts import *

def srd(p, dst, lo, hi, size, add=0):
    if add:
        p.I(f's_add_u32 s{dst}, s{lo}, {add}')
        p.I(f's_addc_u32 s{dst+1}, s{hi}, 0')
    else:
        p.I(f's_mov_b32 s{dst}, s{lo}')
        p.I(f's_mov_b32 s{dst+1}, s{hi}')
    p.I(f's_mov_b32 s{dst+2}, {size}')
    p.I(f's_mov_b32 s{dst+3}, 0x00020000')

def pi_perm(p, dst, src, t):
    p.I(f'v_and_b32 v{dst}, 0x13, v{src}')
    p.I(f'v_and_b32 v{t}, 4, v{src}')
    p.I(f'v_lshl_or_b32 v{dst}, v{t}, 1, v{dst}')
    p.I(f'v_and_b32 v{t}, 8, v{src}')
    p.I(f'v_lshrrev_b32 v{t}, 1, v{t}')
    p.I(f'v_or_b32 v{dst}, v{dst}, v{t}')

def gen_k1(name):
    p = Prog()
    I = p.I
    p.L(name)
    I(f's_cmp_ge_u32 s2, {K1_GRID}')
    I('s_cbranch_scc1 k1_exit')
    I('s_load_dwordx16 s[8:23], s[0:1], 0')
    I('s_load_dwordx2 s[24:25], s[0:1], 80')
    I('v_lshrrev_b32 v1, 6, v0')
    I('v_lshlrev_b32 v2, 4, v0')
    I('v_readfirstlane_b32 s3, v1')
    I(f's_cmp_ge_u32 s2, {NPROD}')
    I('s_cbranch_scc1 k1_node')
    I('s_waitcnt lgkmcnt(0)')
    srd(p, 28, 12, 13, E * 4)
    srd(p, 32, 14, 15, E * 4)
    srd(p, 36, 10, 11, N * 6)
    I('s_lshl_b32 s4, s2, 14')
    I('buffer_load_dwordx4 v[4:7], v2, s[28:31], s4 offen')
    I('buffer_load_dwordx4 v[8:11], v2, s[32:35], s4 offen')
    I('s_lshl_b32 s5, s3, 10')
    I('s_mov_b32 s6, 0')
    I('s_mov_b32 m0, s5')
    for r in range(9):
        I('buffer_load_dwordx4 v2, s[36:39], s6 offen lds')
        I('s_add_u32 m0, m0, 0x4000')
        I('s_add_u32 s6, s6, 0x4000')
    I('s_cmp_ge_u32 s3, 3')
    I('s_cbranch_scc1 k1_e_nolast')
    I('buffer_load_dwordx4 v2, s[36:39], s6 offen lds')
    p.L('k1_e_nolast')
    srd(p, 40, 24, 25, WS_H)
    I('s_cmp_ge_u32 s3, 4')
    I('s_cbranch_scc1 k1_e_nozero')
    I(f'v_mov_b32 v3, {K1_CNT}')
    I('v_lshl_add_u32 v3, v0, 2, v3')
    I('v_mov_b32 v12, 0')
    I('ds_write_b32 v3, v12')
    p.L('k1_e_nozero')
    I('s_lshl_b32 s7, s2, 10')
    I(f's_sub_u32 s7, {E // 4}, s7')
    I('v_cmp_gt_u32 s[44:45], s7, v0')
    I('s_waitcnt vmcnt(9)')
    I(f's_movk_i32 s26, 5243')
    I(f's_mov_b32 s27, {K1_CNT}')
    I('v_mov_b32 v60, 1')
    for k in range(4):
        I(f'v_mul_u32_u24 v{12+k}, 6, v{4+k}')
        I(f'v_mul_u32_u24 v{16+k}, 6, v{8+k}')
        I(f'v_mul_u32_u24 v{48+k}, s26, v{8+k}')
        I(f'v_lshrrev_b32 v{48+k}, 19, v{48+k}')
        I(f'v_mul_u32_u24 v{52+k}, 100, v{48+k}')
        I(f'v_sub_u32 v{52+k}, v{8+k}, v{52+k}')
        I(f'v_lshl_or_b32 v{40+k}, v{52+k}, 24, v{4+k}')
        I(f'v_lshl_add_u32 v{36+k}, v{48+k}, 2, s27')
        I(f'v_lshlrev_b32 v{48+k}, 4, v{48+k}')
    I('s_waitcnt vmcnt(0) lgkmcnt(0)')
    I('s_barrier')
    for k in range(4):
        I(f'ds_read_b64 v[{20+2*k}:{21+2*k}], v{12+k}')
        I(f'ds_read_b64 v[{28+2*k}:{29+2*k}], v{16+k}')
    for k in range(4):
        a = 20 + 2 * k; b = 28 + 2 * k
        I(f'v_lshlrev_b32 v52, 16, v{a}')
        I(f'v_lshlrev_b32 v53, 16, v{b}')
        I(f'v_and_b32 v54, 0xffff0000, v{a}')
        I(f'v_and_b32 v55, 0xffff0000, v{b}')
        I(f'v_lshlrev_b32 v56, 16, v{a+1}')
        I(f'v_lshlrev_b32 v57, 16, v{b+1}')
        I('v_sub_f32 v52, v52, v53')
        I('v_sub_f32 v54, v54, v55')
        I('v_sub_f32 v56, v56, v57')
        I('v_mul_f32 v52, v52, v52')
        I('v_fmac_f32 v52, v54, v54')
        I('v_fmac_f32 v52, v56, v56')
        I(f'v_cmp_gt_f32 vcc, {f32hex(24.1)}, v52')
        I(f's_and_b64 s[{46+2*k}:{47+2*k}], vcc, s[44:45]')
        I(f's_mov_b64 exec, s[{46+2*k}:{47+2*k}]')
        I(f'ds_add_rtn_u32 v{44+k}, v{36+k}, v60')
        I('s_mov_b64 exec, -1')
    I('s_waitcnt lgkmcnt(0)')
    I('s_barrier')
    I('s_mov_b64 s[54:55], 0')
    for k in range(4):
        I(f'v_add_lshl_u32 v{52+k}, v{48+k}, v{44+k}, 2')
        I(f'v_cmp_gt_u32 vcc, {CELLCAP}, v{44+k}')
        I(f's_and_b64 exec, vcc, s[{46+2*k}:{47+2*k}]')
        I(f'ds_write_b32 v{52+k}, v{40+k} offset:4')
        I(f's_andn2_b64 s[{46+2*k}:{47+2*k}], s[{46+2*k}:{47+2*k}], vcc')
        I(f's_or_b64 s[54:55], s[54:55], s[{46+2*k}:{47+2*k}]')
        I('s_mov_b64 exec, -1')
    I('s_cmp_eq_u64 s[54:55], 0')
    I('s_cbranch_scc1 k1_e_noovf')
    I(f'v_mov_b32 v61, {K1_CNT + 1000}')
    I(f's_add_u32 s56, s4, {WS_OVF}')
    for k in range(4):
        lab = f'k1_e_ov{k}'
        I(f's_mov_b64 exec, s[{46+2*k}:{47+2*k}]')
        I(f's_cbranch_execz {lab}')
        I('ds_add_rtn_u32 v62, v61, v60')
        I(f'v_lshl_or_b32 v63, v{8+k}, 15, v{4+k}')
        I('s_waitcnt lgkmcnt(0)')
        I('v_lshlrev_b32 v62, 2, v62')
        I('buffer_store_dword v63, v62, s[40:43], s56 offen')
        p.L(lab)
    I('s_mov_b64 exec, -1')
    p.L('k1_e_noovf')
    I('s_waitcnt lgkmcnt(0)')
    I('s_barrier')
    I('v_cmp_gt_u32 vcc, 1000, v0')
    I('s_and_saveexec_b64 s[58:59], vcc')
    I('s_cbranch_execz k1_exit')
    I('ds_read_b128 v[4:7], v2')
    I('v_and_b32 v3, 0x3fc, v0')
    I(f'v_add_u32 v3, {K1_CNT}, v3')
    I('ds_read_b32 v8, v3')
    I('v_and_b32 v9, 3, v0')
    I('v_cmp_eq_u32 vcc, 0, v9')
    I(f's_mul_i32 s57, s2, {NCONS * 64}')
    I('v_cndmask_b32 v4, v4, v8, vcc')
    I('buffer_store_dwordx4 v[4:7], v2, s[40:43], s57 offen')
    I('s_cmp_lg_u32 s3, 0')
    I('s_cbranch_scc1 k1_exit')
    I(f'v_mov_b32 v10, {K1_CNT + 1000}')
    I('ds_read_b32 v11, v10')
    I('s_lshl_b32 s57, s2, 2')
    I(f's_add_u32 s57, s57, {WS_OVFCNT}')
    I('v_mov_b32 v10, 0')
    I('s_mov_b64 exec, 1')
    I('buffer_store_dword v11, v10, s[40:43], s57 offen')
    I('s_endpgm')
    p.L('k1_node')
    I(f's_sub_u32 s4, s2, {NPROD}')
    I('v_and_b32 v1, 63, v0')
    I('v_lshrrev_b32 v3, 4, v1')
    I('v_and_b32 v4, 15, v1')
    I('v_lshlrev_b32 v5, 2, v3')
    I('v_xor_b32 v5, v5, v4')
    I('v_lshlrev_b32 v5, 4, v5')
    I('v_lshl_or_b32 v5, v3, 8, v5')
    I('v_lshl_add_u32 v6, s3, 2, v3')
    I('v_and_b32 v7, 15, v6')
    I('v_xor_b32 v7, v7, v4')
    I('v_lshlrev_b32 v7, 4, v7')
    I('v_lshl_or_b32 v6, v6, 10, v7')
    I('s_waitcnt lgkmcnt(0)')
    srd(p, 28, 8, 9, N * 1024)
    srd(p, 32, 18, 19, 128 * 256)
    I(f's_mul_i32 s5, s4, {NPN * 1024}')
    I('s_lshl_b32 s6, s3, 10')
    I(f's_add_u32 m0, s6, {K1_SB}')
    I('s_lshl_b32 s7, s3, 11')
    I('buffer_load_dwordx4 v6, s[28:31], s5 offen lds')
    I('s_add_u32 m0, m0, 0x4000')
    I('s_add_u32 s5, s5, 0x10000')
    I('buffer_load_dwordx4 v6, s[28:31], s5 offen lds')
    I('s_cmp_ge_u32 s3, 8')
    I('s_cbranch_scc1 k1_n_no3')
    I('s_add_u32 m0, m0, 0x4000')
    I('s_add_u32 s5, s5, 0x10000')
    I('buffer_load_dwordx4 v6, s[28:31], s5 offen lds')
    p.L('k1_n_no3')
    I('s_mov_b32 m0, s7')
    I('s_nop 0')
    I('buffer_load_dwordx4 v5, s[32:35], s7 offen lds')
    I('buffer_load_dwordx4 v5, s[32:35], s7 offen offset:1024 lds')
    srd(p, 36, 24, 25, N * 256, add=WS_H)
    I('v_and_b32 v8, 31, v1')
    I('v_lshrrev_b32 v9, 5, v1')
    I('s_cmp_lg_u32 s3, 15')
    I('s_cbranch_scc1 k1_n_nowf')
    I('s_cmp_ge_u32 s4, 108')
    I('s_cbranch_scc1 k1_n_nowf')
    I('s_mul_i32 s44, s4, 19')
    I('s_lshr_b32 s44, s44, 9')
    I('s_mul_i32 s45, s44, 27')
    I('s_sub_u32 s45, s4, s45')
    I('s_mul_i32 s46, s45, 57')
    I('s_lshr_b32 s46, s46, 9')
    I('s_mul_i32 s47, s46, 9')
    I('s_sub_u32 s47, s45, s47')
    I('s_lshl_b32 s48, s46, 8')
    I('s_lshl_b32 s49, s44, 6')
    I('s_add_u32 s48, s48, s49')
    I(f's_mul_i32 s49, s47, {16 * 768}')
    I(f's_movk_i32 s52, {16 * 768}')
    I(f's_movk_i32 s53, {8 * 768}')
    I('s_cmp_lt_u32 s47, 8')
    I('s_cselect_b32 s49, s49, 0')
    I('s_cselect_b32 s40, s20, s22')
    I('s_cselect_b32 s41, s21, s23')
    I(f's_cselect_b32 s42, {128 * 768}, s52')
    I('s_mov_b32 s43, 0x00020000')
    I(f's_cselect_b32 s50, {4 * 768}, s53')
    I(f's_cselect_b32 s51, s53, {4 * 768}')
    I('s_add_u32 s48, s48, s49')
    pi_perm(p, 10, 8, 11)
    I('v_lshlrev_b32 v10, 1, v10')
    I('v_mad_u32_u24 v10, v9, s50, v10')
    I('v_add_u32 v11, s51, v10')
    for jj in range(8):
        hi = '_hi' if jj & 1 else ''
        I(f'buffer_load_short_d16{hi} v{64+jj}, v{10 + (jj >> 2)}, s[40:43], s48 offen offset:{(jj & 3) * 768}')
    srd(p, 40, 24, 25, 108 * 1024, add=WS_WF)
    I('s_lshl_b32 s48, s4, 10')
    I('v_lshlrev_b32 v10, 4, v1')
    I('s_waitcnt vmcnt(0)')
    for jj in range(4):
        I(f'v_or_b32 v{72+jj}, v{64+2*jj}, v{65+2*jj}')
    I('buffer_store_dwordx4 v[72:75], v10, s[40:43], s48 offen')
    p.L('k1_n_nowf')
    I('s_and_b32 s44, s3, 3')
    I('s_lshr_b32 s45, s3, 2')
    I('v_lshrrev_b32 v10, 2, v4')
    I('v_and_b32 v11, 1, v3')
    I('v_lshlrev_b32 v11, 1, v11')
    I('v_bfe_u32 v12, v1, 1, 1')
    I('v_or_b32 v11, v11, v12')
    I('v_lshl_or_b32 v11, s44, 2, v11')
    I('v_lshlrev_b32 v12, 2, v10')
    I('v_xor_b32 v11, v11, v12')
    I('v_lshlrev_b32 v11, 4, v11')
    I('v_and_b32 v12, 1, v1')
    I('v_lshl_or_b32 v11, v12, 3, v11')
    I('v_lshl_add_u32 v10, v9, 3, v10')
    I('v_lshl_or_b32 v11, v10, 8, v11')
    I('v_xor_b32 v12, v9, v4')
    I('v_lshlrev_b32 v12, 4, v12')
    I('v_lshl_or_b32 v12, v8, 8, v12')
    I('s_lshl_b32 s46, s45, 13')
    I(f's_add_u32 s46, s46, {K1_SB}')
    I('v_add_u32 v16, s46, v12')
    for s in range(1, 8):
        I(f'v_xor_b32 v{16+s}, {32*s}, v16')
    I(f's_mul_i32 s47, s4, {NPN}')
    I('s_lshl_b32 s48, s45, 5')
    I('s_add_u32 s47, s47, s48')
    I('s_lshl_b32 s47, s47, 8')
    I('s_lshl_b32 s48, s44, 6')
    I('s_add_u32 s47, s47, s48')
    I('v_lshlrev_b32 v13, 4, v9')
    I('v_lshl_or_b32 v13, v8, 8, v13')
    I(f's_mov_b32 s49, {f32hex(-1.4426950408889634)}')
    I('s_waitcnt vmcnt(0)')
    I('s_barrier')
    for s in range(8):
        I(f'ds_read_b64_tr_b16 v[{32+4*s}:{33+4*s}], v11 offset:{16*s*256}')
        I(f'ds_read_b64_tr_b16 v[{34+4*s}:{35+4*s}], v11 offset:{(16*s+4)*256}')
        I(f'ds_read_b128 v[{64+4*s}:{67+4*s}], v{16+s}')
    def task(acc, soff):
        for s in range(8):
            c = '0' if s == 0 else f'v[{acc}:{acc+15}]'
            I(f'v_mfma_f32_32x32x16_bf16 v[{acc}:{acc+15}], v[{32+4*s}:{35+4*s}], v[{64+4*s}:{67+4*s}], {c}')
    def silu_store(acc, soff, t):
        for h in range(2):
            for i in range(8):
                I(f'v_mul_f32 v{t+i}, s49, v{acc+8*h+i}')
            for i in range(8):
                I(f'v_exp_f32 v{t+i}, v{t+i}')
            for i in range(8):
                I(f'v_add_f32 v{t+i}, 1.0, v{t+i}')
            for i in range(8):
                I(f'v_rcp_f32 v{t+i}, v{t+i}')
            for i in range(8):
                I(f'v_mul_f32 v{t+i}, v{t+i}, v{acc+8*h+i}')
            for i in range(4):
                I(f'v_cvt_pk_bf16_f32 v{acc+8*h+i}, v{t+2*i}, v{t+2*i+1}')
            I(f'buffer_store_dwordx4 v[{acc+8*h}:{acc+8*h+3}], v13, s[36:39], {soff} offen offset:{32*h}')
    task(96, 's47')
    I('s_cmp_ge_u32 s3, 4')
    I('s_cbranch_scc1 k1_n_one')
    for s in range(8):
        I(f'ds_read_b128 v[{64+4*s}:{67+4*s}], v{16+s} offset:32768')
    task(112, 's48')
    I(f's_add_u32 s48, s47, {128 * 256}')
    silu_store(112, 's48', 24)
    p.L('k1_n_one')
    silu_store(96, 's47', 24)
    p.L('k1_exit')
    I('s_endpgm')
    p.insert_waits()
    n = p.insert_nops()
    return p
```

```python
from asmlib import *
from consts import *
from k1 import srd, pi_perm

SV, POS, OUT, WS, HS, WF, BASE = 20, 24, 28, 32, 36, 40, 44
FR = 48
MK = 64
(sISS, sQA, sQB, sQC, sB0, sB1, sQP, sE0, sE1, sE2, sE3, sEP, sT, sI, sLIM, sG, sDSL, sRSL, sN, sOVF, sPASS, sT0) = range(80, 102)
sP, sBLK, sPCNT, sT1, sT2, sONES = 4, 5, 6, 7, 18, 19
sGOFF = 12
sC100 = 13
vL, vROW, vDV, vDH, vREC, vVA, vH0, vH1, vRB, vGE, vNID, vONE, vSEL, vT0, vT1, vT2, vT3, vT4, vT5, vGW, vRW = range(1, 22)
PVV, PS, PVR = 32, 48, 64
WFV, WFS, WFR = 80, 96, 112
VV = 128
ACC = 192
GEO = 80
S0, SC = 32, (40, 56, 72)
BM = 120
def aW(G, s): return 4 * (G * 9 + s)
aB = (108, 140)
aH = 172
aR = 204
aI = 208

def rng(k, a, n): return f'{k}[{a}:{a+n-1}]'

def gen_k2(name, dbg=False):
    p = Prog()
    p.auto_vm = False
    I = p.I

    def wait_vm(seq):
        levels = [0, 8, 16, 24, 32, 40, 48, 56]
        done = p.uid('wv')
        I(f's_sub_u32 s{sN}, s{sISS}, s{seq}')
        def rec(lv, last):
            if len(lv) == 1:
                I(f's_waitcnt vmcnt({lv[0]})')
                if not last: I(f's_branch {done}')
                return
            mid = len(lv) // 2
            lo = p.uid('wl')
            I(f's_cmp_lt_u32 s{sN}, {lv[mid]}')
            I(f's_cbranch_scc1 {lo}')
            rec(lv[mid:], False)
            p.L(lo)
            rec(lv[:mid], last)
        rec(levels, True)
        p.L(done)

    def base_loads(buf, soff):
        for comp in range(4):
            for a in range(2):
                r = aB[buf] + 8 * comp + 4 * a
                I(f'buffer_load_dwordx4 {rng("a", r, 4)}, v{vROW}, {rng("s", BASE, 4)}, {soff} offen offset:{comp*256 + a*32}')

    def dma_list():
        L = []
        L.append(f'ds_read2_b32 v[{vT0}:{vT1}], v{vREC} offset0:0 offset1:4')
        L.append(f'v_add_u32 v{vREC}, 128, v{vREC}')
        L.append(f'v_lshl_add_u32 v{vT2}, v{vT0}, 10, v{vDV}')
        L.append(f'v_lshl_add_u32 v{vT3}, v{vT0}, 8, v{vDH}')
        L.append(f'v_lshl_add_u32 v{vT4}, v{vT1}, 10, v{vDV}')
        L.append(f'v_lshl_add_u32 v{vT5}, v{vT1}, 8, v{vDH}')
        P = []
        for g2 in range(2):
            vo, vh = (vT2, vT3) if g2 == 0 else (vT4, vT5)
            b = g2 * GRP
            P.append([f's_add_u32 m0, s{sDSL}, {b + 3072}', f'buffer_load_dwordx4 v{vh}, {rng("s", HS, 4)}, 0 offen lds'])
            for c in range(3):
                m = (f's_mov_b32 m0, s{sDSL}' if b + 768 * c == 0 else f's_add_u32 m0, s{sDSL}, {b + 768*c}')
                off = f' offset:{256*c}' if c else ''
                P.append([m, f'buffer_load_dwordx4 v{vo}, {rng("s", SV, 4)}, 0 offen{off} lds'])
        T = [f's_add_u32 s{sDSL}, s{sDSL}, {SLOT}',
             f's_cmp_ge_u32 s{sDSL}, {4*SLOT}',
             f's_cselect_b32 s{sT0}, {4*SLOT}, 0',
             f's_sub_u32 s{sDSL}, s{sDSL}, s{sT0}',
             f's_add_u32 s{sISS}, s{sISS}, 8',
             f's_mov_b32 s{sQA}, s{sQB}',
             f's_mov_b32 s{sQB}, s{sQC}',
             f's_mov_b32 s{sQC}, s{sISS}']
        return L, P, T

    def lds_prefill():
        I(f'v_mov_b32 v40, {NULLREC}')
        I('v_mov_b32 v41, v40')
        I('v_mov_b32 v42, v40')
        I('v_mov_b32 v43, v40')
        I(f'v_mov_b32 v44, {K2_SLOTS}')
        I('v_lshl_add_u32 v44, v0, 4, v44')
        I('ds_write_b128 v44, v[40:43]')
        I(f'v_cmp_gt_u32 vcc, {NSLOTS // 4 - 256}, v0')
        I(f's_and_saveexec_b64 s[{sT0-1}:{sT0}], vcc') if False else None
        I('s_mov_b64 exec, vcc')
        I('ds_write_b128 v44, v[40:43] offset:4096')
        I('s_mov_b64 exec, -1')
        I(f'v_mov_b32 v45, {K2_CNT}')
        I('v_mov_b32 v46, 0')
        I('v_mov_b32 v47, 0')
        I('ds_write_b64 v45, v[46:47]')
        I('ds_write_b64 v45, v[46:47] offset:8')
        I('ds_write_b64 v45, v[46:47] offset:16')

    GR, GP, GS = 48, 52, 60
    def pos_loads():
        for k in range(2):
            skip = p.uid('pl')
            I(f's_lshl_b32 s{sT0}, s3, 1')
            I(f's_add_u32 s{sT0}, s{sT0}, s{sT1}')
            if k: I(f's_add_u32 s{sT0}, s{sT0}, 8')
            I(f's_cmp_ge_u32 s{sT0}, s{sT}')
            I(f's_cbranch_scc1 {skip}')
            I(f's_lshl_b32 s{sT0}, s{sT1}, 7')
            I(f's_add_u32 s{sT0}, s{sT0}, {K2_SLOTS + 1024 * k}')
            I(f'v_lshl_add_u32 v40, v0, 2, s{sT0}')
            I(f'ds_read_b32 v{GR+k}, v40')
            I(f'v_and_b32 v41, 0xffffff, v{GR+k}')
            I(f'v_lshrrev_b32 v{GR+k}, 24, v{GR+k}')
            I(f'v_add_u32 v42, s{sC100}, v{GR+k}')
            I('v_mul_u32_u24 v43, 6, v41')
            I('v_mul_u32_u24 v44, 6, v42')
            I('v_and_b32 v41, -4, v43')
            I('v_and_b32 v42, -4, v44')
            I(f'buffer_load_dwordx2 v[{GP+4*k}:{GP+4*k+1}], v41, {rng("s", POS, 4)}, 0 offen')
            I(f'buffer_load_dwordx2 v[{GP+4*k+2}:{GP+4*k+3}], v42, {rng("s", POS, 4)}, 0 offen')
            I('v_and_b32 v43, 2, v43')
            I('v_and_b32 v44, 2, v44')
            I(f'v_lshlrev_b32 v{GS+2*k}, 3, v43')
            I(f'v_lshlrev_b32 v{GS+2*k+1}, 3, v44')
            I(f's_add_u32 s{sISS}, s{sISS}, 2')
            p.L(skip)
        I(f's_mov_b32 s{sQP}, s{sISS}')

    def rnd(d, s): I(f'v_cvt_pk_bf16_f32 v{d}, 0, v{s}')

    def geometry(k):
        skip = p.uid('ge')
        I(f's_lshl_b32 s{sT0}, s3, 1')
        I(f's_add_u32 s{sT0}, s{sT0}, s{sI}')
        if k: I(f's_add_u32 s{sT0}, s{sT0}, 8')
        I(f's_cmp_ge_u32 s{sT0}, s{sT}')
        I(f's_cbranch_scc1 {skip}')
        a = GP + 4 * k
        X = 64
        for e in range(2):
            r = a + 2 * e; sh = GS + 2 * k + e; o = X + 3 * e
            I(f'v_alignbit_b32 v{X+6}, v{r+1}, v{r}, v{sh}')
            I(f'v_lshrrev_b32 v{X+7}, v{sh}, v{r+1}')
            I(f'v_lshlrev_b32 v{o}, 16, v{X+6}')
            I(f'v_and_b32 v{o+1}, 0xffff0000, v{X+6}')
            I(f'v_lshlrev_b32 v{o+2}, 16, v{X+7}')
        for c in range(3): I(f'v_sub_f32 v{X+c}, v{X+c}, v{X+3+c}')
        for c in range(3): rnd(X + c, X + c)
        for c in range(3): I(f'v_mul_f32 v{X+3+c}, v{X+c}, v{X+c}')
        for c in range(3): rnd(X + 3 + c, X + 3 + c)
        D, RI, FC = X + 8, X + 9, X + 10
        I(f'v_add_f32 v{D}, v{X+3}, v{X+4}')
        I(f'v_add_f32 v{D}, v{D}, v{X+5}')
        rnd(D, D)
        I(f'v_add_f32 v{D}, {f32hex(1e-8)}, v{D}')
        rnd(D, D)
        I(f'v_sqrt_f32 v{D}, v{D}')
        rnd(D, D)
        I(f'v_rcp_f32 v{RI}, v{D}')
        I(f'v_mul_f32 v{FC}, {f32hex(3.141592653589793)}, v{D}')
        rnd(FC, FC)
        I(f'v_mul_f32 v{FC}, {f32hex(0.2)}, v{FC}')
        rnd(FC, FC)
        I(f'v_mul_f32 v{FC}, 0.15915494, v{FC}')
        I(f'v_cos_f32 v{FC}, v{FC}')
        for c in range(3): I(f'v_mul_f32 v{X+c}, v{X+c}, v{RI}')
        rnd(FC, FC)
        for c in range(3): rnd(X + c, X + c)
        I(f'v_add_f32 v{FC}, 1.0, v{FC}')
        rnd(FC, FC)
        I(f'v_cmp_gt_f32 vcc, {f32hex(5.0)}, v{D}')
        I(f'v_mul_f32 v{FC}, 0.5, v{FC}')
        I(f'v_cndmask_b32 v{FC}, 0, v{FC}, vcc')
        for c in range(3): I(f'v_mul_f32 v{X+c}, v{X+c}, v{FC}')
        I(f'v_cvt_pk_bf16_f32 v{X+3}, v{FC}, v{X}')
        I(f'v_cvt_pk_bf16_f32 v{X+4}, v{X+1}, v{X+2}')
        off = 8 * 320 * k
        I(f'ds_write_b16 v{vGW}, v{GR+k} offset:{off}')
        I(f'ds_write_b16 v{vGW}, v{X+3} offset:{off+64}')
        I(f'ds_write_b16_d16_hi v{vGW}, v{X+3} offset:{off+128}')
        I(f'ds_write_b16 v{vGW}, v{X+4} offset:{off+192}')
        I(f'ds_write_b16_d16_hi v{vGW}, v{X+4} offset:{off+256}')
        Y = 80
        for q in range(16): I(f'v_mul_f32 v{Y+q}, s{FR+q}, v{D}')
        for q in range(16): rnd(Y + q, Y + q)
        for q in range(16): I(f'v_mul_f32 v{Y+q}, 0.15915494, v{Y+q}')
        for q in range(16): I(f'v_fract_f32 v{Y+q}, v{Y+q}')
        for q in range(16): I(f'v_sin_f32 v{Y+q}, v{Y+q}')
        for q in range(16): rnd(Y + q, Y + q)
        for q in range(16): I(f'v_mul_f32 v{Y+q}, v{Y+q}, v{RI}')
        for q in range(8): I(f'v_cvt_pk_bf16_f32 v{96+q}, v{Y+2*q}, v{Y+2*q+1}')
        I(f'ds_write_b128 v{vRW}, v[96:99] offset:{8192*k}')
        I(f'ds_write_b128 v{vRW}, v[100:103] offset:{8192*k+512}')
        p.L(skip)

    def mf(d, a, b, c): return f'v_mfma_f32_32x32x16_bf16 {d}, {a}, {b}, {c}'

    def weave(ms, fs, per):
        fs = list(fs)
        for m in ms:
            I(m)
            for _ in range(per):
                if fs:
                    f = fs.pop(0)
                    for x in (f if isinstance(f, list) else [f]): I(x)
        for f in fs:
            for x in (f if isinstance(f, list) else [f]): I(x)

    p.L(name)
    I(f's_cmp_ge_u32 s2, {NCONS}')
    I('s_cbranch_scc1 k2_exit')
    I('s_load_dwordx4 s[8:11], s[0:1], 0')
    I('s_load_dwordx2 s[12:13], s[0:1], 32')
    I('s_load_dwordx2 s[14:15], s[0:1], 64')
    I('s_load_dwordx2 s[16:17], s[0:1], 80')
    I('v_lshrrev_b32 v22, 6, v0')
    I(f'v_and_b32 v{vL}, 63, v0')
    I('v_readfirstlane_b32 s3, v22')
    I('v_lshrrev_b32 v23, 2, v0')
    I(f'v_mul_u32_u24 v23, {NCONS*64}, v23')
    I('v_and_b32 v24, 3, v0')
    I('v_lshl_add_u32 v23, v24, 4, v23')
    I('s_lshl_b32 s4, s2, 6')
    I(f's_add_u32 s5, s4, {64*NCONS*64}')
    I(f'v_lshlrev_b32 v25, 4, v{vL}')
    I(f'v_and_b32 v26, 31, v{vL}')
    I(f'v_lshrrev_b32 v27, 5, v{vL}')
    I('s_waitcnt lgkmcnt(0)')
    I(f's_load_dwordx8 s[{MK}:{MK+7}], s[12:13], 0')
    srd(p, WS, 16, 17, NPROD * NCONS * 64)
    I(f'buffer_load_dwordx4 v[32:35], v23, {rng("s", WS, 4)}, s4 offen')
    I(f'buffer_load_dwordx4 v[36:39], v23, {rng("s", WS, 4)}, s5 offen')
    srd(p, WF, 16, 17, 108 * 1024, add=WS_WF)
    I(f's_mul_i32 s6, s3, {27 * 1024}')
    for f in range(27):
        if f and f % 4 == 0: I('s_add_u32 s6, s6, 4096')
        I(f'buffer_load_dwordx4 {rng("a", 4*f, 4)}, v25, {rng("s", WF, 4)}, s6 offen offset:{(f % 4) * 1024}')
    srd(p, SV, 8, 9, N * 1024)
    srd(p, BASE, 8, 9, N * 1024)
    I(f's_mul_i32 s7, s2, 100')
    I('v_add_lshl_u32 v28, s7, v26, 10')
    I('v_lshl_add_u32 v28, v27, 4, v28')
    I('s_lshl_b32 s6, s3, 6')
    I('v_add_u32 v28, s6, v28')
    I('v_cmp_gt_u32 vcc, 25, v26')
    I('v_mov_b32 v29, 0x80000000')
    I(f'v_cndmask_b32 v{vROW}, v29, v28, vcc')
    I('s_movk_i32 s6, 25600')
    base_loads(0, '0')
    base_loads(1, 's6')
    srd(p, POS, 10, 11, N * 6)
    srd(p, OUT, 14, 15, N * 1024)
    srd(p, HS, 16, 17, N * 256, add=WS_H)
    I(f's_mov_b32 s{sB0}, 37')
    I(f's_mov_b32 s{sB1}, 45')
    I(f's_mov_b32 s{sISS}, 45')
    I(f's_mov_b32 s{sOVF}, 0')
    I(f's_mov_b32 s{sPASS}, 0')
    I(f's_mov_b32 s{sONES}, 0x00010001')
    I('s_waitcnt lgkmcnt(0)')
    for q in range(8):
        I(f's_lshl_b32 s{FR+2*q}, s{MK+q}, 16')
        I(f's_and_b32 s{FR+2*q+1}, s{MK+q}, 0xffff0000')
    I(f's_mov_b32 s{sC100}, s7')
    lds_prefill()
    I(f'v_and_b32 v28, 15, v{vL}')
    I(f'v_lshrrev_b32 v29, 4, v{vL}')
    I(f'v_lshlrev_b32 v{vDV}, 4, v28')
    I(f'v_add_u32 v{vDV}, 256, v{vDV}')
    I(f'v_xor_b32 v{vDH}, v28, v29')
    I(f'v_lshlrev_b32 v{vDH}, 4, v{vDH}')
    pi_perm(p, 30, 26, 31)
    I(f'v_mov_b32 v{vONE}, 1')
    I(f'v_mov_b32 v{vSEL}, 0x0c0c0100')
    I('v_lshrrev_b32 v31, 5, v0')
    I(f'v_mul_u32_u24 v{vGW}, 320, v31')
    I(f'v_lshl_add_u32 v{vGW}, v30, 1, v{vGW}')
    I(f'v_add_u32 v{vGW}, {K2_GEO}, v{vGW}')
    I(f'v_lshlrev_b32 v{vRW}, 10, v31')
    I(f'v_lshl_add_u32 v{vRW}, v26, 4, v{vRW}')
    I(f'v_add_u32 v{vRW}, {K2_RBF}, v{vRW}')
    I('v_lshlrev_b32 v31, 3, v27')
    I('v_sub_u32 v31, v30, v31')
    I('v_add_u32 v31, 16, v31')
    I('v_lshl_or_b32 v31, v31, 16, v31')
    I('s_mov_b32 s6, 0x3f803f80')
    for a in range(2):
        for r in range(4):
            k0 = 16 + 16 * a + 2 * r
            I(f'v_xor_b32 v40, {k0 | ((k0 + 1) << 16)}, v31')
            I(f'v_pk_sub_u16 v40, s{sONES}, v40 clamp')
            I('v_pk_mul_lo_u16 v40, s6, v40')
            I(f'v_accvgpr_write_b32 a{aI + 4*a + r}, v40')
    I(f'v_mul_u32_u24 v176, {GRP}, v27')
    I('v_lshl_add_u32 v176, v30, 1, v176')
    I('s_lshl_b32 s6, s3, 6')
    I('v_add_u32 v176, s6, v176')
    I('v_lshrrev_b32 v40, 2, v26')
    I(f'v_mul_u32_u24 v40, {GRP}, v40')
    I('v_and_b32 v41, 3, v26')
    I('v_lshl_add_u32 v40, v41, 8, v40')
    I('v_add_u32 v40, 3072, v40')
    I('v_xor_b32 v41, v41, v27')
    I('v_lshl_add_u32 v177, v41, 4, v40')
    I('v_xor_b32 v41, 2, v41')
    I('v_lshl_add_u32 v178, v41, 4, v40')
    I('s_lshl_b32 s6, s3, 5')
    I(f's_add_u32 s6, s6, {K2_SLOTS}')
    I('v_lshl_add_u32 v179, v29, 2, s6')
    I(f'v_add_u32 v180, {K2_RBF}, v25')
    I('v_lshlrev_b32 v181, 4, v27')
    I(f'v_add_u32 v181, {K2_GEO}, v181')
    I('v_lshl_or_b32 v182, v26, 16, v26')
    I('v_lshlrev_b32 v40, 2, v24')
    I('v_add_u32 v41, -1, v40')
    I('v_add_u32 v42, 1, v40')
    I('v_add_u32 v43, 2, v40')
    I('s_waitcnt lgkmcnt(0)')
    I('s_barrier')
    I('s_waitcnt vmcnt(43)')
    idx = [41, 40, 42, 43]
    for Lq in range(2):
        I(f'v_mov_b32_dpp v44, v{32+4*Lq} quad_perm:[0,0,0,0] row_mask:0xf bank_mask:0xf')
        I(f'v_cmp_lt_u32 vcc, {CELLCAP}, v44')
        I(f'v_min_u32 v44, {CELLCAP}, v44')
        I(f's_or_b32 s{sOVF}, s{sOVF}, vcc_lo')
        I(f's_or_b32 s{sOVF}, s{sOVF}, vcc_hi')
        for k in range(4):
            m = MK + 2 * (4 * Lq + k)
            I(f'v_cmp_lt_u32 s[{m}:{m+1}], v{idx[k]}, v44')
    I(f's_cmp_eq_u32 s{sOVF}, 0')
    I('s_cbranch_scc1 k2_bin')
    I(f'v_mov_b32 v45, {K2_CNT}')
    I(f'ds_write_b32 v45, v{vONE} offset:16')
    p.L('k2_bin')
    I(f's_mov_b32 s{sT0}, {K2_CNT}')
    for r in range(8):
        I(f'v_lshrrev_b32 v{48+r}, 24, v{32+r}')
        I(f'v_mul_u32_u24 v{48+r}, 41, v{48+r}')
        I(f'v_bfe_u32 v{48+r}, v{48+r}, 10, 2')
        I(f'v_lshl_add_u32 v{56+r}, v{48+r}, 2, s{sT0}')
    for r in range(8):
        m = MK + 2 * r
        I(f's_mov_b64 exec, s[{m}:{m+1}]')
        I(f'ds_add_rtn_u32 v{56+r}, v{56+r}, v{vONE}')
    I('s_mov_b64 exec, -1')
    I(f's_movk_i32 s{sT1}, 0x202')
    for r in range(8):
        I(f'v_mad_u32_u24 v{48+r}, v{48+r}, s{sT1}, v{vSEL}')
    I(f'v_mov_b32 v45, {K2_CNT}')
    I('s_waitcnt lgkmcnt(0)')
    I('s_barrier')
    I('ds_read_b128 v[40:43], v45')
    I('ds_read_b32 v44, v45 offset:16')
    I('s_waitcnt lgkmcnt(0)')
    I(f'v_readfirstlane_b32 s{sE0}, v40')
    I(f'v_readfirstlane_b32 s{sE1}, v41')
    I(f'v_readfirstlane_b32 s{sE2}, v42')
    I(f'v_readfirstlane_b32 s{sE3}, v43')
    I(f'v_readfirstlane_b32 s{sT0}, v44')
    I(f's_or_b32 s{sOVF}, s{sOVF}, s{sT0}')
    I(f's_add_u32 s{sE1}, s{sE1}, s{sE0}')
    I(f's_add_u32 s{sE2}, s{sE2}, s{sE1}')
    I(f's_add_u32 s{sE3}, s{sE3}, s{sE2}')
    I(f's_cmp_eq_u32 s{sPASS}, 0')
    I('s_cbranch_scc1 k2_place')
    I(f's_cmp_eq_u32 s{sE3}, 0')
    I('s_cbranch_scc1 k2_ovf_next')
    I('s_waitcnt vmcnt(0)')
    I('buffer_inv sc1')
    I('s_movk_i32 s{0}, 25600'.format(sT0))
    base_loads(0, '0')
    base_loads(1, f's{sT0}')
    I(f's_mov_b32 s{sB0}, 8')
    I(f's_mov_b32 s{sB1}, 16')
    I(f's_mov_b32 s{sISS}, 16')
    p.L('k2_place')
    B4 = K2_SLOTS // 4
    I(f's_lshl_b32 s{sT0}, s{sE0}, 16')
    I(f's_add_u32 s{sT0}, s{sT0}, {B4 | (B4 << 16)}')
    I(f's_lshl_b32 s{sT1}, s{sE2}, 16')
    I(f's_add_u32 s{sT1}, s{sT1}, s{sE1}')
    I(f's_add_u32 s{sT1}, s{sT1}, {B4 | (B4 << 16)}')
    I(f'v_mov_b32 v40, s{sT0}')
    for r in range(8):
        I(f'v_perm_b32 v{48+r}, s{sT1}, v40, v{48+r}')
        I(f'v_add_lshl_u32 v{48+r}, v{48+r}, v{56+r}, 2')
    for r in range(8):
        m = MK + 2 * r
        I(f's_mov_b64 exec, s[{m}:{m+1}]')
        I(f'ds_write_b32 v{48+r}, v{32+r}')
    I('s_mov_b64 exec, -1')
    I(f's_add_u32 s{sT}, s{sE3}, 31')
    I(f's_lshr_b32 s{sT}, s{sT}, 5')
    I(f's_mov_b32 s{sI}, -1')
    I(f's_mov_b32 s{sLIM}, 0')
    I(f's_mov_b32 s{sEP}, 0')
    I(f's_mov_b32 s{sG}, 0')
    I(f's_mov_b32 s{sGOFF}, 0')
    I(f's_mul_i32 s{sDSL}, s3, {2 * GRP}')
    I(f's_mov_b32 s{sRSL}, {3 * SLOT}')
    I(f'v_mov_b32 v{vREC}, v179')
    I(f'v_mov_b32 v{vNID}, v182')
    I('s_waitcnt lgkmcnt(0)')
    I('s_barrier')
    I(f's_mov_b32 s{sT1}, 0')
    pos_loads()
    for t in range(3):
        L, P, T = dma_list()
        for x in L: I(x)
        for pc in P:
            for x in pc: I(x)
        for x in T: I(x)
    p.L('k2_init')
    I(f's_bitcmp1_b32 s{sG}, 0')
    I('s_cbranch_scc1 k2_init1')
    for buf in range(2):
        if buf: p.L('k2_init1')
        wait_vm(sB0 if buf == 0 else sB1)
        for a in range(2):
            for comp in range(4):
                acc = rng('v', ACC + 16 * comp, 16)
                I(mf(acc, rng('a', aI + 4 * a, 4), rng('a', aB[buf] + 8 * comp + 4 * a, 4), '0' if a == 0 else acc))
        I(f's_cmp_ge_u32 s{sG}, 2')
        I('s_cbranch_scc1 k2_init_done')
        I(f's_add_u32 s{sT0}, s{sGOFF}, 51200')
        base_loads(buf, f's{sT0}')
        I(f's_add_u32 s{sISS}, s{sISS}, 8')
        I(f's_mov_b32 s{sB0 if buf == 0 else sB1}, s{sISS}')
        if buf == 0: I('s_branch k2_init_done')
    p.L('k2_init_done')
    I(f's_cmp_eq_u32 s{sE0}, s{sEP}')
    I('s_cbranch_scc1 k2_adv')
    I(f's_cmp_lt_u32 s{sEP}, s{sLIM}')
    I('s_cbranch_scc1 k2_set')
    p.L('k2_tile_next')
    I(f's_add_u32 s{sI}, s{sI}, 1')
    I(f's_add_u32 s{sLIM}, s{sLIM}, 32')
    I(f's_and_b32 s{sT0}, s{sI}, {CH - 1}')
    I('s_cbranch_scc1 k2_tile')
    I(f's_cmp_eq_u32 s{sI}, 0')
    I('s_cbranch_scc1 k2_geo')
    I('s_waitcnt lgkmcnt(0)')
    I('s_barrier')
    I(f's_mov_b32 s{sT1}, s{sI}')
    pos_loads()
    p.L('k2_geo')
    wait_vm(sQP)
    geometry(0)
    geometry(1)
    I(f'v_subrev_u32 v{vRB}, 1024, v180')
    I(f'v_subrev_u32 v{vGE}, 320, v181')
    p.L('k2_tile')
    I(f's_add_u32 s{sRSL}, s{sRSL}, {SLOT}')
    I(f's_cmp_ge_u32 s{sRSL}, {4*SLOT}')
    I(f's_cselect_b32 s{sRSL}, 0, s{sRSL}')
    I(f'v_add_u32 v{vVA}, s{sRSL}, v176')
    I(f'v_add_u32 v{vH0}, s{sRSL}, v177')
    I(f'v_add_u32 v{vH1}, s{sRSL}, v178')
    I(f'v_add_u32 v{vRB}, 1024, v{vRB}')
    I(f'v_add_u32 v{vGE}, 320, v{vGE}')
    wait_vm(sQA)
    I('s_waitcnt lgkmcnt(0)')
    I('s_barrier')
    I(f'ds_read_b128 {rng("a", aR, 4)}, v{vRB}')
    for s in range(8):
        I(f'ds_read_b128 {rng("a", aH + 4*s, 4)}, v{vH1 if s & 1 else vH0} offset:{(s >> 1) * 64}')
    L, P, T = dma_list()
    for x in L: I(x)
    vreads = []
    for c in range(3):
        for r in range(16):
            vreads.append(f'ds_read_u16_d16_hi v{VV + 16*c + r}, v{vVA} offset:{2*(r >> 2)*GRP + c*1024 + (r & 3)*256}')
    def pm(G, Pd, Wd):
        ms = [mf(rng('v', Wd, 16), rng('a', aR, 4), rng('a', aW(G, 8), 4), '0')]
        for s in range(8):
            ms.append(mf(rng('v', Pd, 16), rng('a', aH + 4 * s, 4), rng('a', aW(G, s), 4), '0' if s == 0 else rng('v', Pd, 16)))
        return ms
    fl = []
    for k in range(8):
        fl.append(P[k]); fl += vreads[6 * k:6 * k + 6]
    weave(pm(1, PVV, WFV), fl, 7)
    for x in T: I(x)
    mvv = [f'v_mul_f32 v{PVV+r}, v{PVV+r}, v{WFV+r}' for r in range(16)]
    tv = []
    for c in range(3):
        for r in range(16):
            tv.append(f'v_mul_f32 v{VV+16*c+r}, v{PVV+r}, v{VV+16*c+r}')
        for r in range(8):
            tv.append(f'v_cvt_pk_bf16_f32 v{VV+16*c+r}, v{VV+16*c+2*r}, v{VV+16*c+2*r+1}')
    ms = pm(0, PS, WFS)
    I(ms[0]); I(ms[1]); I(ms[2])
    allf = mvv + tv
    weave(ms[3:], allf[:36], 6)
    def mpack(Pd, Wd):
        a = [f'v_mul_f32 v{Pd+r}, v{Pd+r}, v{Wd+r}' for r in range(16)]
        b = [f'v_cvt_pk_bf16_f32 v{Pd+r}, v{Pd+2*r}, v{Pd+2*r+1}' for r in range(8)]
        return a + b
    weave(pm(2, PVR, WFR), allf[36:] + mpack(PS, WFS), 6)
    for x in mpack(PVR, WFR): I(x)
    for arr in range(5):
        for q in range(2):
            I(f'ds_read_b128 {rng("v", GEO + 8*arr + 4*q, 4)}, v{vGE} offset:{arr*64 + q*32}')
    p.L('k2_set')
    for j in range(8):
        I(f'v_xor_b32 v{BM+j}, v{GEO+j}, v{vNID}')
    for j in range(8):
        I(f'v_pk_sub_u16 v{BM+j}, s{sONES}, v{BM+j} clamp')
    for j in range(8):
        I(f'v_pk_mul_lo_u16 v{S0+j}, v{GEO+8+j}, v{BM+j}')
    ms = []
    for q in range(2):
        ms.append(mf(rng('v', ACC, 16), rng('v', PS + 4 * q, 4), rng('v', S0 + 4 * q, 4), rng('v', ACC, 16)))
        for c in range(3):
            acc = rng('v', ACC + 16 * (c + 1), 16)
            ms.append(mf(acc, rng('v', VV + 16 * c + 4 * q, 4), rng('v', S0 + 4 * q, 4), acc))
    fl = [f'v_pk_mul_lo_u16 v{SC[c]+j}, v{GEO+16+8*c+j}, v{BM+j}' for c in range(3) for j in range(8)]
    weave(ms, fl, 4)
    for c in range(3):
        for q in range(2):
            acc = rng('v', ACC + 16 * (c + 1), 16)
            I(mf(acc, rng('v', PVR + 4 * q, 4), rng('v', SC[c] + 4 * q, 4), acc))
    I(f's_cmp_gt_u32 s{sE0}, s{sLIM}')
    I('s_cbranch_scc1 k2_tile_next')
    p.L('k2_adv')
    for comp in range(4):
        for a in range(2):
            b = ACC + 16 * comp + 8 * a
            for r in range(4):
                I(f'v_cvt_pk_bf16_f32 v{b+r}, v{b+2*r}, v{b+2*r+1}')
            I(f'buffer_store_dwordx4 {rng("v", b, 4)}, v{vROW}, {rng("s", OUT, 4)}, s{sGOFF} offen offset:{comp*256 + a*32}')
    I(f's_add_u32 s{sISS}, s{sISS}, 8')
    I(f's_add_u32 s{sG}, s{sG}, 1')
    I(f's_add_u32 s{sGOFF}, s{sGOFF}, 25600')
    I(f's_mov_b32 s{sEP}, s{sE0}')
    I(f's_mov_b32 s{sE0}, s{sE1}')
    I(f's_mov_b32 s{sE1}, s{sE2}')
    I(f's_mov_b32 s{sE2}, s{sE3}')
    I(f'v_add_u32 v{vNID}, {25 | (25 << 16)}, v{vNID}')
    I(f's_cmp_lt_u32 s{sG}, 4')
    I('s_cbranch_scc1 k2_init')
    I(f's_cmp_eq_u32 s{sOVF}, 0')
    I('s_cbranch_scc1 k2_exit')
    I(f's_cmp_lg_u32 s{sPASS}, 0')
    I('s_cbranch_scc1 k2_ovf_next')
    I(f's_mov_b32 s{sPASS}, 1')
    I(f's_mov_b32 s{sP}, -1')
    I(f's_mov_b32 s{sBLK}, 0')
    I(f's_mov_b32 s{sPCNT}, 0')
    I(f's_mov_b32 s{WS+2}, {WS_H}')
    srd(p, BASE, 14, 15, N * 1024)
    p.L('k2_ovf_next')
    I(f's_cmp_lt_u32 s{sBLK}, s{sPCNT}')
    I('s_cbranch_scc1 k2_ovf_blk')
    I(f's_add_u32 s{sP}, s{sP}, 1')
    I(f's_cmp_ge_u32 s{sP}, {NPROD}')
    I('s_cbranch_scc1 k2_exit')
    I(f's_lshl_b32 s{sT0}, s{sP}, 2')
    I(f's_add_u32 s{sT0}, s{sT0}, {WS_OVFCNT}')
    I(f's_load_dword s{sPCNT}, s[16:17], s{sT0}')
    I(f's_mov_b32 s{sBLK}, 0')
    I('s_waitcnt lgkmcnt(0)')
    I(f's_min_u32 s{sPCNT}, s{sPCNT}, 4096')
    I('s_branch k2_ovf_next')
    p.L('k2_ovf_blk')
    I('s_waitcnt vmcnt(0) lgkmcnt(0)')
    I('s_barrier')
    lds_prefill()
    I(f's_lshl_b32 s{sT0}, s{sP}, 12')
    I(f's_add_u32 s{sT0}, s{sT0}, s{sBLK}')
    I(f's_lshl_b32 s{sT0}, s{sT0}, 2')
    I(f's_add_u32 s{sT0}, s{sT0}, {WS_OVF}')
    I('v_lshlrev_b32 v40, 4, v0')
    I(f'buffer_load_dwordx4 v[32:35], v40, {rng("s", WS, 4)}, s{sT0} offen')
    I(f's_sub_u32 s{sT1}, s{sPCNT}, s{sBLK}')
    I(f's_add_u32 s{sBLK}, s{sBLK}, 1024')
    I('v_lshlrev_b32 v40, 2, v0')
    I('s_waitcnt vmcnt(0) lgkmcnt(0)')
    I('s_barrier')
    for k in range(4):
        m = MK + 2 * k
        I(f'v_add_u32 v41, {k}, v40')
        I(f'v_cmp_gt_u32 s[{m}:{m+1}], s{sT1}, v41')
        I(f'v_lshrrev_b32 v42, 15, v{32+k}')
        I(f'v_subrev_u32 v42, s{sC100}, v42')
        I('v_cmp_gt_u32 vcc, 100, v42')
        I(f's_and_b64 s[{m}:{m+1}], s[{m}:{m+1}], vcc')
        I(f'v_and_b32 v{32+k}, 0x7fff, v{32+k}')
        I(f'v_lshl_or_b32 v{32+k}, v42, 24, v{32+k}')
        I(f's_mov_b64 s[{m+8}:{m+9}], 0')
    I('s_branch k2_bin')
    p.L('k2_exit')
    I('s_endpgm')
    p.insert_waits()
    p.insert_nops()
    return p
```

```python
import sys
from consts import *
import k1, k2
HDR = open('gather_scatter__molecular_angular_painn__graph.s.ref').read().split('; Override launch')[0]
def desc(name, nfv, acc, sg=102):
    return f'''.amdhsa_kernel {name}
  .amdhsa_next_free_vgpr {nfv}
  .amdhsa_next_free_sgpr {sg}
  .amdhsa_accum_offset {acc}
  .amdhsa_group_segment_fixed_size 0
  .amdhsa_kernarg_size 88
  .amdhsa_user_sgpr_count 2
  .amdhsa_user_sgpr_kernarg_segment_ptr 1
  .amdhsa_system_sgpr_workgroup_id_x 1
.end_amdhsa_kernel
'''
def build(path):
    n1, n2 = 'painn_prep_kernel', 'painn_msg_kernel'
    o = HDR
    o += f'; @launch kernel={n1} grid=({K1_GRID},1,1) block=(1024,1,1) lds={K1_LDS}\n'
    o += f'; @launch kernel={n2} grid=({NCONS},1,1) block=(256,1,1) lds={K2_LDS}\n'
    o += '.amdgcn_target "amdgcn-amd-amdhsa--gfx950"\n.text\n'
    for n, g in ((n1, k1.gen_k1), (n2, k2.gen_k2)):
        o += f'.globl {n}\n.p2align 8\n.type {n},@function\n'
        o += g(n).text()
    o += '.section .rodata,"a"\n.p2align 6\n' + desc(n1, 128, 128) + '.p2align 6\n' + desc(n2, 512, 256)
    open(path, 'w').write(o)
if __name__ == '__main__':
    build(sys.argv[1] if len(sys.argv) > 1 else 'gather_scatter__molecular_angular_painn__graph.s')
```

```python
import struct
N = 25000; E = 400000
NPROD = 98; NCONS = 256; CELLCAP = 15
NP = 98; NG = 7; GN = 14
NPN = 160
NNODEWG = (N + NPN - 1) // NPN
K1_GRID = NPROD + NNODEWG
WS_CELLS = 0
WS_OVFCNT = NPROD * NCONS * 64
WS_OVF = 0x190000
WS_H = 0x400000
WS_WF = 0xB00000
NFRAG = 112
K1_CNT = 150528
K1_OVC = K1_CNT + 1024
K1_LDS = K1_CNT + 1024 + 64
K1_SB = 32768
def f32hex(x): return '0x%08x' % struct.unpack('<I', struct.pack('<f', x))[0]
SLOT = 32768
NRING = 3
RSTR = 1040
STGB = GN * RSTR
K2_STG = NRING * SLOT
CH = 16
K2_RBF = K2_STG + 2 * STGB
GEOB = 448
K2_GEO = K2_RBF + CH * 1024
K2_SLOTS = K2_GEO + CH * GEOB
NSLOTS = 1536
K2_CNT = (K2_SLOTS + NSLOTS * 4 + 255) // 256 * 256
K2_LDS = K2_CNT + 64
NULLREC = N | (127 << 24)
WS_PROF = 0x4000000
WS_PROF1 = 0x4100000
assert K2_LDS <= 163840
```

```python
from asmlib import *
from consts import *

def srd(p, dst, lo, hi, size, add=0):
    if add:
        p.I(f's_add_u32 s{dst}, s{lo}, {add}')
        p.I(f's_addc_u32 s{dst+1}, s{hi}, 0')
    else:
        p.I(f's_mov_b32 s{dst}, s{lo}')
        p.I(f's_mov_b32 s{dst+1}, s{hi}')
    p.I(f's_mov_b32 s{dst+2}, {size}')
    p.I(f's_mov_b32 s{dst+3}, 0x00020000')

def pi_perm(p, dst, src, t):
    p.I(f'v_and_b32 v{dst}, 0x13, v{src}')
    p.I(f'v_and_b32 v{t}, 4, v{src}')
    p.I(f'v_lshl_or_b32 v{dst}, v{t}, 1, v{dst}')
    p.I(f'v_and_b32 v{t}, 8, v{src}')
    p.I(f'v_lshrrev_b32 v{t}, 1, v{t}')
    p.I(f'v_or_b32 v{dst}, v{dst}, v{t}')

def gen_k1(name, dbg=False):
    p = Prog()
    I = p.I
    mr = [126, 125]
    def mark(i):
        if not dbg: return
        I('s_memrealtime s[90:91]')
        I('s_waitcnt lgkmcnt(0)')
        I(f'v_writelane_b32 v{mr[0]}, s90, {i}')
    def dump():
        if not dbg: return
        I('s_mov_b64 exec, -1')
        I('s_waitcnt vmcnt(0)')
        mark(15)
        srd(p, 92, 24, 25, 1 << 22, add=WS_PROF1)
        I('s_lshl_b32 s90, s2, 4')
        I('s_add_u32 s90, s90, s3')
        I('s_lshl_b32 s90, s90, 8')
        I(f'v_and_b32 v{mr[1]}, 63, v0')
        I(f'v_lshlrev_b32 v{mr[1]}, 2, v{mr[1]}')
        I(f'buffer_store_dword v{mr[0]}, v{mr[1]}, s[92:95], s90 offen')
    p.L(name)
    I(f's_cmp_ge_u32 s2, {K1_GRID}')
    I('s_cbranch_scc1 k1_exit')
    I('s_load_dwordx16 s[8:23], s[0:1], 0')
    I('s_load_dwordx2 s[24:25], s[0:1], 80')
    I('v_lshrrev_b32 v1, 6, v0')
    I('v_lshlrev_b32 v2, 4, v0')
    I('v_readfirstlane_b32 s3, v1')
    if dbg: I('v_mov_b32 v126, 0')
    mark(0)
    I(f's_cmp_ge_u32 s2, {NPROD}')
    I('s_cbranch_scc1 k1_node')
    I('s_waitcnt lgkmcnt(0)')
    srd(p, 28, 12, 13, E * 4)
    srd(p, 32, 14, 15, E * 4)
    srd(p, 36, 10, 11, N * 6)
    I('s_lshl_b32 s4, s2, 14')
    p.auto_vm = False
    I('buffer_load_dwordx4 v[4:7], v2, s[28:31], s4 offen')
    I('buffer_load_dwordx4 v[8:11], v2, s[32:35], s4 offen')
    p.auto_vm = True
    I('s_lshl_b32 s5, s3, 10')
    I('s_lshr_b32 s6, s2, 3')
    I('s_mul_i32 s7, s6, 205')
    I('s_lshr_b32 s7, s7, 11')
    I('s_mul_i32 s7, s7, 10')
    I('s_sub_u32 s6, s6, s7')
    I('s_lshl_b32 s6, s6, 14')
    for r in range(10):
        lab = f'k1_e_t{r}'
        I('s_add_u32 m0, s6, s5')
        I(f's_cmp_ge_u32 m0, {K1_CNT}')
        I(f's_cbranch_scc1 {lab}')
        I('buffer_load_dwordx4 v2, s[36:39], s6 offen lds')
        p.L(lab)
        if r < 9:
            I('s_add_u32 s6, s6, 0x4000')
            I(f's_cmp_ge_u32 s6, {10 * 0x4000}')
            I('s_cselect_b32 s6, 0, s6')
    srd(p, 40, 24, 25, WS_H)
    I('s_cmp_ge_u32 s3, 4')
    I('s_cbranch_scc1 k1_e_nozero')
    I(f'v_mov_b32 v3, {K1_CNT}')
    I('v_lshl_add_u32 v13, v0, 2, v3')
    I('v_mov_b32 v12, 0')
    I('ds_write_b32 v13, v12')
    I('ds_write_b32 v3, v12 offset:1024')
    p.L('k1_e_nozero')
    I('s_lshl_b32 s7, s2, 10')
    I(f's_sub_u32 s7, {E // 4}, s7')
    I('v_cmp_gt_u32 s[44:45], s7, v0')
    mark(1)
    I('s_waitcnt vmcnt(9)')
    mark(2)
    I(f's_movk_i32 s26, 10700')
    I(f's_mov_b32 s27, {K1_CNT}')
    I(f's_movk_i32 s60, {NP}')
    I(f's_movk_i32 s61, 147')
    I('v_mov_b32 v60, 1')
    for k in range(4):
        I(f'v_mul_u32_u24 v{12+k}, 6, v{4+k}')
        I(f'v_mul_u32_u24 v{16+k}, 6, v{8+k}')
        I(f'v_mul_u32_u24 v{48+k}, s26, v{8+k}')
        I(f'v_lshrrev_b32 v{48+k}, 20, v{48+k}')
        I(f'v_mul_u32_u24 v{52+k}, s60, v{48+k}')
        I(f'v_sub_u32 v{52+k}, v{8+k}, v{52+k}')
        I(f'v_mul_u32_u24 v56, s61, v{52+k}')
        I(f'v_lshrrev_b32 v56, 11, v56')
        I(f'v_lshl_add_u32 v{52+k}, v56, 1, v{52+k}')
        I(f'v_lshl_or_b32 v{40+k}, v{52+k}, 24, v{4+k}')
        I(f'v_lshl_add_u32 v{36+k}, v{48+k}, 2, s27')
        I(f'v_lshlrev_b32 v{48+k}, 4, v{48+k}')
        I(f'v_lshlrev_b32 v{64+k}, 4, v{4+k}')
        I(f'v_lshlrev_b32 v{68+k}, 4, v{8+k}')
        I(f'v_and_b32 v{12+k}, -4, v{12+k}')
        I(f'v_and_b32 v{16+k}, -4, v{16+k}')
    I('s_waitcnt vmcnt(0) lgkmcnt(0)')
    mark(3)
    I('s_barrier')
    mark(4)
    for k in range(4):
        I(f'ds_read2_b32 v[{20+2*k}:{21+2*k}], v{12+k} offset0:0 offset1:1')
        I(f'ds_read2_b32 v[{28+2*k}:{29+2*k}], v{16+k} offset0:0 offset1:1')
    for k in range(4):
        a = 20 + 2 * k; b = 28 + 2 * k
        I(f'v_alignbit_b32 v{a}, v{a+1}, v{a}, v{64+k}')
        I(f'v_alignbit_b32 v{b}, v{b+1}, v{b}, v{68+k}')
        I(f'v_lshrrev_b32 v{a+1}, v{64+k}, v{a+1}')
        I(f'v_lshrrev_b32 v{b+1}, v{68+k}, v{b+1}')
        I(f'v_lshlrev_b32 v52, 16, v{a}')
        I(f'v_lshlrev_b32 v53, 16, v{b}')
        I(f'v_and_b32 v54, 0xffff0000, v{a}')
        I(f'v_and_b32 v55, 0xffff0000, v{b}')
        I(f'v_lshlrev_b32 v56, 16, v{a+1}')
        I(f'v_lshlrev_b32 v57, 16, v{b+1}')
        I('v_sub_f32 v52, v52, v53')
        I('v_sub_f32 v54, v54, v55')
        I('v_sub_f32 v56, v56, v57')
        I('v_mul_f32 v52, v52, v52')
        I('v_fmac_f32 v52, v54, v54')
        I('v_fmac_f32 v52, v56, v56')
        I(f'v_cmp_gt_f32 vcc, {f32hex(24.1)}, v52')
        I(f's_and_b64 s[{46+2*k}:{47+2*k}], vcc, s[44:45]')
        I(f's_mov_b64 exec, s[{46+2*k}:{47+2*k}]')
        I(f'ds_add_rtn_u32 v{44+k}, v{36+k}, v60')
        I('s_mov_b64 exec, -1')
    I('s_waitcnt lgkmcnt(0)')
    I('s_barrier')
    mark(5)
    I('s_mov_b64 s[54:55], 0')
    for k in range(4):
        I(f'v_add_lshl_u32 v{52+k}, v{48+k}, v{44+k}, 2')
        I(f'v_cmp_gt_u32 vcc, {CELLCAP}, v{44+k}')
        I(f's_and_b64 exec, vcc, s[{46+2*k}:{47+2*k}]')
        I(f'ds_write_b32 v{52+k}, v{40+k} offset:4')
        I(f's_andn2_b64 s[{46+2*k}:{47+2*k}], s[{46+2*k}:{47+2*k}], vcc')
        I(f's_or_b64 s[54:55], s[54:55], s[{46+2*k}:{47+2*k}]')
        I('s_mov_b64 exec, -1')
    I('s_cmp_eq_u64 s[54:55], 0')
    I('s_cbranch_scc1 k1_e_noovf')
    I(f'v_mov_b32 v61, {K1_OVC}')
    I(f's_add_u32 s56, s4, {WS_OVF}')
    for k in range(4):
        lab = f'k1_e_ov{k}'
        I(f's_mov_b64 exec, s[{46+2*k}:{47+2*k}]')
        I(f's_cbranch_execz {lab}')
        I('ds_add_rtn_u32 v62, v61, v60')
        I(f'v_lshl_or_b32 v63, v{8+k}, 15, v{4+k}')
        I('s_waitcnt lgkmcnt(0)')
        I('v_lshlrev_b32 v62, 2, v62')
        I('buffer_store_dword v63, v62, s[40:43], s56 offen')
        p.L(lab)
    I('s_mov_b64 exec, -1')
    p.L('k1_e_noovf')
    I('s_waitcnt lgkmcnt(0)')
    I('s_barrier')
    mark(6)
    I('ds_read_b128 v[4:7], v2')
    I('v_and_b32 v3, 0x3fc, v0')
    I(f'v_add_u32 v3, {K1_CNT}, v3')
    I('ds_read_b32 v8, v3')
    I('v_and_b32 v9, 3, v0')
    I('v_cmp_eq_u32 vcc, 0, v9')
    I('v_cndmask_b32 v4, v4, v8, vcc')
    I('buffer_store_dwordx4 v[4:7], v2, s[40:43], s4 offen')
    dump()
    I('s_cmp_lg_u32 s3, 0')
    I('s_cbranch_scc1 k1_exit')
    I(f'v_mov_b32 v10, {K1_OVC}')
    I('ds_read_b32 v11, v10')
    I('s_lshl_b32 s57, s2, 2')
    I(f's_add_u32 s57, s57, {WS_OVFCNT}')
    I('v_mov_b32 v10, 0')
    I('s_mov_b64 exec, 1')
    I('buffer_store_dword v11, v10, s[40:43], s57 offen')
    I('s_endpgm')
    p.L('k1_node')
    if dbg: I('v_mov_b32 v14, v126')
    mr[0] = 14; mr[1] = 15
    I(f's_sub_u32 s4, s2, {NPROD}')
    I('v_and_b32 v1, 63, v0')
    I('v_lshrrev_b32 v3, 4, v1')
    I('v_and_b32 v4, 15, v1')
    I('v_lshlrev_b32 v5, 2, v3')
    I('v_xor_b32 v5, v5, v4')
    I('v_lshlrev_b32 v5, 4, v5')
    I('v_lshl_or_b32 v5, v3, 8, v5')
    I('v_lshl_add_u32 v6, s3, 2, v3')
    I('v_and_b32 v7, 15, v6')
    I('v_xor_b32 v7, v7, v4')
    I('v_lshlrev_b32 v7, 4, v7')
    I('v_lshl_or_b32 v6, v6, 10, v7')
    I('s_waitcnt lgkmcnt(0)')
    srd(p, 28, 8, 9, N * 1024)
    srd(p, 32, 18, 19, 128 * 256)
    I(f's_mul_i32 s5, s4, {NPN * 1024}')
    I('s_lshl_b32 s6, s3, 10')
    I(f's_add_u32 m0, s6, {K1_SB}')
    I('s_lshl_b32 s7, s3, 11')
    I('buffer_load_dwordx4 v6, s[28:31], s5 offen lds')
    I('s_add_u32 m0, m0, 0x4000')
    I('s_add_u32 s5, s5, 0x10000')
    I('buffer_load_dwordx4 v6, s[28:31], s5 offen lds')
    I('s_cmp_ge_u32 s3, 8')
    I('s_cbranch_scc1 k1_n_no3')
    I('s_add_u32 m0, m0, 0x4000')
    I('s_add_u32 s5, s5, 0x10000')
    I('buffer_load_dwordx4 v6, s[28:31], s5 offen lds')
    p.L('k1_n_no3')
    I('s_mov_b32 m0, s7')
    I('s_nop 0')
    I('buffer_load_dwordx4 v5, s[32:35], s7 offen lds')
    I('buffer_load_dwordx4 v5, s[32:35], s7 offen offset:1024 lds')
    srd(p, 36, 24, 25, N * 256, add=WS_H)
    I('v_and_b32 v8, 31, v1')
    I('v_lshrrev_b32 v9, 5, v1')
    I('s_cmp_lg_u32 s3, 15')
    I('s_cbranch_scc1 k1_n_nowf')
    I(f's_cmp_ge_u32 s4, {NFRAG}')
    I('s_cbranch_scc1 k1_n_nowf')
    I('s_mul_i32 s44, s4, 147')
    I('s_lshr_b32 s44, s44, 11')
    I('s_mul_i32 s45, s44, 14')
    I('s_sub_u32 s45, s4, s45')
    I('s_lshr_b32 s46, s45, 2')
    I('s_and_b32 s47, s45, 3')
    I('s_lshl_b32 s48, s46, 8')
    I(f's_mul_i32 s49, s47, {32 * 768}')
    I('s_add_u32 s48, s48, s49')
    I('s_lshl_b32 s49, s47, 9')
    I(f's_movk_i32 s52, {16 * 768}')
    I(f's_movk_i32 s53, {8 * 768}')
    I('s_cmp_lt_u32 s45, 12')
    I('s_cselect_b32 s48, s48, s49')
    I('s_cselect_b32 s40, s20, s22')
    I('s_cselect_b32 s41, s21, s23')
    I(f's_cselect_b32 s42, {128 * 768}, s52')
    I('s_mov_b32 s43, 0x00020000')
    I('s_cselect_b32 s50, s52, s53')
    I('s_cselect_b32 s51, s53, 0x100')
    I('s_lshl_b32 s49, s44, 5')
    I('s_add_u32 s48, s48, s49')
    I('v_lshlrev_b32 v10, 1, v4')
    I('v_mad_u32_u24 v10, v9, s50, v10')
    I('v_and_b32 v11, 1, v3')
    I(f'v_mul_u32_u24 v11, {4 * 768}, v11')
    I('v_add_u32 v10, v10, v11')
    I('v_add_u32 v11, s51, v10')
    for jj in range(8):
        hi = '_hi' if jj & 1 else ''
        I(f'buffer_load_short_d16{hi} v{64+jj}, v{10 + (jj >> 2)}, s[40:43], s48 offen offset:{(jj & 3) * 768}')
    srd(p, 40, 24, 25, NFRAG * 1024, add=WS_WF)
    I('s_lshl_b32 s48, s4, 10')
    I('v_lshlrev_b32 v10, 4, v1')
    I('s_waitcnt vmcnt(0)')
    for jj in range(4):
        I(f'v_or_b32 v{72+jj}, v{64+2*jj}, v{65+2*jj}')
    I('buffer_store_dwordx4 v[72:75], v10, s[40:43], s48 offen')
    p.L('k1_n_nowf')
    I('s_and_b32 s44, s3, 3')
    I('s_lshr_b32 s45, s3, 2')
    I('v_lshrrev_b32 v10, 2, v4')
    I('v_and_b32 v11, 1, v3')
    I('v_lshlrev_b32 v11, 1, v11')
    I('v_bfe_u32 v12, v1, 1, 1')
    I('v_or_b32 v11, v11, v12')
    I('v_lshl_or_b32 v11, s44, 2, v11')
    I('v_lshlrev_b32 v12, 2, v10')
    I('v_xor_b32 v11, v11, v12')
    I('v_lshlrev_b32 v11, 4, v11')
    I('v_and_b32 v12, 1, v1')
    I('v_lshl_or_b32 v11, v12, 3, v11')
    I('v_lshl_add_u32 v10, v9, 3, v10')
    I('v_lshl_or_b32 v11, v10, 8, v11')
    I('v_xor_b32 v12, v9, v4')
    I('v_lshlrev_b32 v12, 4, v12')
    I('v_lshl_or_b32 v12, v8, 8, v12')
    I('s_lshl_b32 s46, s45, 13')
    I(f's_add_u32 s46, s46, {K1_SB}')
    I('v_add_u32 v16, s46, v12')
    for s in range(1, 8):
        I(f'v_xor_b32 v{16+s}, {32*s}, v16')
    I(f's_mul_i32 s47, s4, {NPN}')
    I('s_lshl_b32 s48, s45, 5')
    I('s_add_u32 s47, s47, s48')
    I('s_lshl_b32 s47, s47, 8')
    I('s_lshl_b32 s48, s44, 6')
    I('s_add_u32 s47, s47, s48')
    I('v_lshlrev_b32 v13, 4, v9')
    I('v_lshl_or_b32 v13, v8, 8, v13')
    I(f's_mov_b32 s49, {f32hex(-1.4426950408889634)}')
    mark(1)
    I('s_waitcnt vmcnt(0)')
    mark(3)
    I('s_barrier')
    mark(4)
    for s in range(8):
        I(f'ds_read_b64_tr_b16 v[{32+4*s}:{33+4*s}], v11 offset:{16*s*256}')
        I(f'ds_read_b64_tr_b16 v[{34+4*s}:{35+4*s}], v11 offset:{(16*s+4)*256}')
        I(f'ds_read_b128 v[{64+4*s}:{67+4*s}], v{16+s}')
    def task(acc, soff):
        for s in range(8):
            c = '0' if s == 0 else f'v[{acc}:{acc+15}]'
            I(f'v_mfma_f32_32x32x16_bf16 v[{acc}:{acc+15}], v[{32+4*s}:{35+4*s}], v[{64+4*s}:{67+4*s}], {c}')
    def silu_store(acc, soff, t):
        for h in range(2):
            for i in range(8):
                I(f'v_mul_f32 v{t+i}, s49, v{acc+8*h+i}')
            for i in range(8):
                I(f'v_exp_f32 v{t+i}, v{t+i}')
            for i in range(8):
                I(f'v_add_f32 v{t+i}, 1.0, v{t+i}')
            for i in range(8):
                I(f'v_rcp_f32 v{t+i}, v{t+i}')
            for i in range(8):
                I(f'v_mul_f32 v{t+i}, v{t+i}, v{acc+8*h+i}')
            for i in range(4):
                I(f'v_cvt_pk_bf16_f32 v{acc+8*h+i}, v{t+2*i}, v{t+2*i+1}')
            I(f'buffer_store_dwordx4 v[{acc+8*h}:{acc+8*h+3}], v13, s[36:39], {soff} offen offset:{32*h}')
    task(96, 's47')
    I('s_cmp_ge_u32 s3, 4')
    I('s_cbranch_scc1 k1_n_one')
    for s in range(8):
        I(f'ds_read_b128 v[{64+4*s}:{67+4*s}], v{16+s} offset:32768')
    task(112, 's48')
    I(f's_add_u32 s48, s47, {128 * 256}')
    silu_store(112, 's48', 24)
    p.L('k1_n_one')
    mark(5)
    silu_store(96, 's47', 24)
    mark(6)
    dump()
    p.L('k1_exit')
    I('s_endpgm')
    p.insert_waits()
    n = p.insert_nops()
    return p
```

```python
from asmlib import *
from consts import *
from k1 import srd

SV, POS, OUT, WS, HS, WF, BASE = 20, 24, 28, 32, 36, 40, 44
FR = 48
MK = 64
XM = 72
ROLE = 74
(sE0, sEP, sT, sI, sLIM, sG, sDSL, sRSL, sOVF, sPASS, sT0, sT1, sROW, sBUF, sSTW, sGW2, sNB, sONES, sBF1, sX, sROW0) = range(76, 97)
sP, sBLK, sPCNT = 4, 5, 6
vL, vL16, vDV0, vDV1, vDH0, vDH1, vREC = range(1, 8)
vHB = 8; vVB = 12; vHA = 13; vVA = 17
vRB, vGE, vNID, vONE, vENDS, vSTA, vSTR, vGW, vIW, vRW = range(18, 28)
vT = 28
vRB0, vGE0, vREC0, vNID0, vGS = 34, 35, 36, 37, 38
PVR, PVV, PS = 40, 48, 56
WVR, WVV, WSS = 64, 72, 80
VP = 88; RH = 100; ID = 124; S = 128; ACC = 132; VL = 148
NV = 160
def aW(G, ks): return 16 * G + 4 * ks
def aWR(G): return 48 + 2 * G
aH = 56
aR = 88
aI = 92

def rng(k, a, n): return f'{k}[{a}:{a+n-1}]'
def m32(d, a, b, c): return f'v_mfma_f32_16x16x32_bf16 {d}, {a}, {b}, {c}'
def m16(d, a, b, c): return f'v_mfma_f32_16x16x16_bf16 {d}, {a}, {b}, {c}'

def gen_k2(name, dbg=False):
    p = Prog()
    p.auto_vm = False
    I = p.I

    def mark(i):
        if not dbg: return
        I('s_memrealtime s[98:99]')
        I('s_waitcnt lgkmcnt(0)')
        I('s_and_b32 s98, s98, 0x7ffffff')
        I(f's_or_b32 s98, s98, {i << 27}')
        I('s_mov_b32 s99, m0')
        I('s_mov_b32 m0, s18')
        I('v_writelane_b32 v39, s98, m0')
        I('s_mov_b32 m0, s99')
        I('s_add_u32 s18, s18, 1')

    def wait_tiles(sreg, cap):
        done = p.uid('wt')
        for n in range(cap, 0, -1):
            nxt = p.uid('wn')
            I(f's_cmp_lt_u32 s{sreg}, {n}')
            I(f's_cbranch_scc1 {nxt}')
            I(f's_waitcnt vmcnt({8 * n})')
            I(f's_branch {done}')
            p.L(nxt)
        I('s_waitcnt vmcnt(0)')
        p.L(done)

    def base_dma(soff, lbase):
        skip = p.uid('bd')
        for j in range(4):
            if j == 3:
                I('s_cmp_ge_u32 s3, 6')
                I(f's_cbranch_scc1 {skip}')
            if j == 0:
                I(f's_mov_b32 m0, s{lbase}')
                so = soff
            else:
                I(f's_add_u32 m0, s{lbase}, {j * 4 * RSTR}')
                I(f's_add_u32 s{sX}, s{soff}, {j * 4096}')
                so = sX
            I(f'buffer_load_dwordx4 v{vL16}, {rng("s", BASE, 4)}, s{so} offen lds')
        p.L(skip)

    def base_first():
        I(f's_add_u32 s{sT0}, s{sROW0}, {GN * 1024}')
        I(f's_add_u32 s{sT1}, s{sSTW}, {STGB}')
        base_dma(sROW0, sSTW)
        base_dma(sT0, sT1)

    def dma_list():
        L0 = [f'ds_read2_b32 v[{vT}:{vT+1}], v{vREC} offset0:0 offset1:4',
              f'v_add_u32 v{vREC}, 128, v{vREC}']
        L1 = [f'v_lshl_add_u32 v{vT+2}, v{vT}, 10, v{vDV0}',
              f'v_lshl_add_u32 v{vT+3}, v{vT}, 8, v{vDH0}',
              f'v_lshl_add_u32 v{vT+4}, v{vT+1}, 10, v{vDV1}',
              f'v_lshl_add_u32 v{vT+5}, v{vT+1}, 8, v{vDH1}']
        P = []
        for j in range(2):
            vo, vh = vT + 2 + 2 * j, vT + 3 + 2 * j
            b = j * 4096
            P.append([f's_add_u32 m0, s{sDSL}, {b + 3072}', f'buffer_load_dwordx4 v{vh}, {rng("s", HS, 4)}, 0 offen lds'])
            for c in range(3):
                m = (f's_mov_b32 m0, s{sDSL}' if b + 768 * c == 0 else f's_add_u32 m0, s{sDSL}, {b + 768*c}')
                off = f' offset:{256*c}' if c else ''
                P.append([m, f'buffer_load_dwordx4 v{vo}, {rng("s", SV, 4)}, 0 offen{off} lds'])
        T = [f's_add_u32 s{sDSL}, s{sDSL}, {SLOT}',
             f's_cmp_ge_u32 s{sDSL}, {NRING*SLOT}',
             f's_cselect_b32 s{sT0}, {NRING*SLOT}, 0',
             f's_sub_u32 s{sDSL}, s{sDSL}, s{sT0}']
        return L0, L1, P, T

    def zero_cnt():
        I(f'v_and_b32 v44, 15, v{vL}')
        I(f'v_mov_b32 v45, {K2_CNT}')
        I('v_lshl_add_u32 v45, v44, 2, v45')
        I('v_mov_b32 v46, 0')
        I('ds_write_b32 v45, v46')

    GR, GP, GSH = 148, 150, 154
    def pos_loads(sChunk):
        skip = p.uid('pl')
        I(f's_add_u32 s{sT0}, s{sGW2}, {sChunk}')
        I(f's_cmp_ge_u32 s{sT0}, s{sT}')
        I(f's_cbranch_scc1 {skip}')
        if sChunk == '0':
            I(f'ds_read_b32 v{GR}, v{vGS}')
        else:
            I(f's_lshl_b32 s{sT0}, {sChunk}, 7')
            I(f'v_add_u32 v40, s{sT0}, v{vGS}')
            I(f'ds_read_b32 v{GR}, v40')
        I(f'v_and_b32 v41, 0xffffff, v{GR}')
        I(f'v_lshrrev_b32 v42, 28, v{GR}')
        I(f'v_lshrrev_b32 v{GR}, 24, v{GR}')
        I('v_lshlrev_b32 v42, 1, v42')
        I(f'v_sub_u32 v42, v{GR}, v42')
        I(f'v_add_u32 v42, s{sNB}, v42')
        I('v_mul_u32_u24 v43, 6, v41')
        I('v_mul_u32_u24 v44, 6, v42')
        I('v_and_b32 v43, -4, v43')
        I('v_and_b32 v44, -4, v44')
        I(f'buffer_load_dwordx2 v[{GP}:{GP+1}], v43, {rng("s", POS, 4)}, 0 offen')
        I(f'buffer_load_dwordx2 v[{GP+2}:{GP+3}], v44, {rng("s", POS, 4)}, 0 offen')
        I(f'v_lshlrev_b32 v{GSH}, 4, v41')
        I(f'v_lshlrev_b32 v{GSH+1}, 4, v42')
        p.L(skip)

    def rnd(d, s): I(f'v_cvt_pk_bf16_f32 v{d}, 0, v{s}')

    def geometry():
        skip = p.uid('ge')
        I(f's_add_u32 s{sT0}, s{sGW2}, s{sI}')
        I(f's_cmp_ge_u32 s{sT0}, s{sT}')
        I(f's_cbranch_scc1 {skip}')
        X = 40
        for e in range(2):
            r = GP + 2 * e; sh = GSH + e; o = X + 3 * e
            I(f'v_alignbit_b32 v{X+6}, v{r+1}, v{r}, v{sh}')
            I(f'v_lshrrev_b32 v{X+7}, v{sh}, v{r+1}')
            I(f'v_lshlrev_b32 v{o}, 16, v{X+6}')
            I(f'v_and_b32 v{o+1}, 0xffff0000, v{X+6}')
            I(f'v_lshlrev_b32 v{o+2}, 16, v{X+7}')
        for c in range(3): I(f'v_sub_f32 v{X+c}, v{X+c}, v{X+3+c}')
        for c in range(3): rnd(X + c, X + c)
        for c in range(3): I(f'v_mul_f32 v{X+3+c}, v{X+c}, v{X+c}')
        for c in range(3): rnd(X + 3 + c, X + 3 + c)
        D, RI, FC = X + 8, X + 9, X + 10
        I(f'v_add_f32 v{D}, v{X+3}, v{X+4}')
        I(f'v_add_f32 v{D}, v{D}, v{X+5}')
        rnd(D, D)
        I(f'v_add_f32 v{D}, {f32hex(1e-8)}, v{D}')
        rnd(D, D)
        I(f'v_sqrt_f32 v{D}, v{D}')
        I(f'ds_write_b16 v{vIW}, v{GR}')
        rnd(D, D)
        Y = 64
        I(f'v_rcp_f32 v{RI}, v{D}')
        I(f'v_mul_f32 v{FC}, {f32hex(3.141592653589793)}, v{D}')
        for q in range(16): I(f'v_mul_f32 v{Y+q}, s{FR+q}, v{D}')
        rnd(FC, FC)
        I(f'v_mul_f32 v{FC}, {f32hex(0.2)}, v{FC}')
        rnd(FC, FC)
        I(f'v_mul_f32 v{FC}, 0.15915494, v{FC}')
        I(f'v_cos_f32 v{FC}, v{FC}')
        for c in range(3): I(f'v_mul_f32 v{X+c}, v{X+c}, v{RI}')
        rnd(FC, FC)
        for c in range(3): rnd(X + c, X + c)
        for c in range(3): I(f'ds_write_b32 v{vGW}, v{X+c} offset:{128*c}')
        I(f'v_add_f32 v{FC}, 1.0, v{FC}')
        rnd(FC, FC)
        I(f'v_cmp_gt_f32 vcc, {f32hex(5.0)}, v{D}')
        I(f'v_mul_f32 v{FC}, 0.5, v{FC}')
        for q in range(16): rnd(Y + q, Y + q)
        I(f'v_cndmask_b32 v{FC}, 0, v{FC}, vcc')
        I(f'v_mul_f32 v{RI}, v{RI}, v{FC}')
        for q in range(16): I(f'v_mul_f32 v{Y+q}, 0.15915494, v{Y+q}')
        for q in range(16): I(f'v_fract_f32 v{Y+q}, v{Y+q}')
        for q in range(16): I(f'v_sin_f32 v{Y+q}, v{Y+q}')
        for q in range(16): rnd(Y + q, Y + q)
        for q in range(16): I(f'v_mul_f32 v{Y+q}, v{Y+q}, v{RI}')
        for q in range(8): I(f'v_cvt_pk_bf16_f32 v{80+q}, v{Y+2*q}, v{Y+2*q+1}')
        I(f'ds_write2_b64 v{vRW}, v[80:81], v[82:83] offset0:0 offset1:32')
        I(f'ds_write2_b64 v{vRW}, v[84:85], v[86:87] offset0:64 offset1:96')
        p.L(skip)

    def weave(ms, fs, per):
        fs = list(fs)
        for m in ms:
            I(m)
            for _ in range(per):
                if fs:
                    f = fs.pop(0)
                    if callable(f): f()
                    else: I(f)
        for f in fs:
            if callable(f): f()
            else: I(f)

    def masks():
        a = [f'v_xor_b32 v{S+j}, v{ID+j}, v{vNID}' for j in range(4)]
        a += [f'v_pk_sub_u16 v{S+j}, s{sONES}, v{S+j} clamp' for j in range(4)]
        a += [f'v_pk_mul_lo_u16 v{S+j}, s{sBF1}, v{S+j}' for j in range(4)]
        return a
    def seg(comp):
        a = PS if comp == 0 else RH + 8 * (comp - 1)
        acc = rng('v', ACC + 4 * comp, 4)
        return m32(acc, rng('v', a, 4), rng('v', S, 4), acc)

    p.L(name)
    I(f's_cmp_ge_u32 s2, {NCONS}')
    I('s_cbranch_scc1 k2_exit')
    I('s_load_dwordx2 s[16:17], s[0:1], 80')
    I('s_load_dwordx4 s[8:11], s[0:1], 0')
    I('s_load_dwordx2 s[12:13], s[0:1], 32')
    I('s_load_dwordx2 s[14:15], s[0:1], 64')
    I('v_lshrrev_b32 v40, 6, v0')
    I(f'v_and_b32 v{vL}, 63, v0')
    I('v_readfirstlane_b32 s3, v40')
    if dbg:
        I('s_mov_b32 s18, 0')
        I('v_mov_b32 v39, 0')
        mark(1)
    I('v_lshrrev_b32 v41, 2, v0')
    I('v_and_b32 v47, 3, v0')
    I('v_lshlrev_b32 v42, 4, v47')
    I('v_lshl_add_u32 v41, v41, 14, v42')
    I('s_lshl_b32 s4, s2, 6')
    I(f'v_lshlrev_b32 v{vL16}, 4, v{vL}')
    I(f's_mul_i32 s6, s3, {14 * 1024}')
    I(f's_mul_i32 s{sNB}, s2, {NP}')
    I('s_waitcnt lgkmcnt(0)')
    I(f's_load_dwordx8 s[{MK}:{MK+7}], s[12:13], 0')
    srd(p, WS, 16, 17, NPROD * NCONS * 64)
    I(f'buffer_load_dwordx4 v[48:51], v41, {rng("s", WS, 4)}, s4 offen')
    srd(p, WF, 16, 17, NFRAG * 1024, add=WS_WF)
    srd(p, BASE, 8, 9, N * 1024)
    I('s_and_b32 s7, s3, 3')
    I(f's_add_u32 s{sROW0}, s{sNB}, s7')
    I(f's_lshl_b32 s{sROW0}, s{sROW0}, 10')
    I(f's_mul_i32 s{sSTW}, s7, {RSTR}')
    I(f's_add_u32 s{sSTW}, s{sSTW}, {K2_STG}')
    I('s_cmp_lt_u32 s3, 4')
    I(f's_cselect_b64 s[{ROLE}:{ROLE+1}], -1, 0')
    I('s_cbranch_scc1 k2_nobase')
    base_first()
    p.L('k2_nobase')
    order = [12, 13] + list(range(8, 12)) + list(range(4, 8)) + list(range(0, 4))
    for f in order:
        I(f's_add_u32 s5, s6, {(f // 4) * 4096}')
        I(f'buffer_load_dwordx4 {rng("a", 4*f, 4)}, v{vL16}, {rng("s", WF, 4)}, s5 offen offset:{(f % 4) * 1024}')
    zero_cnt()
    srd(p, SV, 8, 9, N * 1024)
    srd(p, POS, 10, 11, N * 6)
    srd(p, OUT, 14, 15, N * 1024)
    srd(p, HS, 16, 17, N * 256, add=WS_H)
    I(f's_mov_b32 s{sOVF}, 0')
    I(f's_mov_b32 s{sPASS}, 0')
    I(f's_mov_b32 s{sONES}, 0x00010001')
    I(f's_mov_b32 s{sBF1}, 0x3f803f80')
    I(f's_mov_b32 s{XM}, 0x3fff3fff')
    I(f's_mov_b32 s{XM+1}, 0x3fff3fff')
    I(f's_xor_b32 s{sGW2}, s3, 4')
    I(f's_lshl_b32 s{sGW2}, s{sGW2}, 1')
    I('s_waitcnt lgkmcnt(0)')
    I('s_barrier')
    for q in range(8):
        I(f's_lshl_b32 s{FR+2*q}, s{MK+q}, 16')
        I(f's_and_b32 s{FR+2*q+1}, s{MK+q}, 0xffff0000')
    I(f'v_lshrrev_b32 v43, 4, v{vL}')
    I(f'v_mov_b32 v{vONE}, 1')
    I('v_lshlrev_b32 v40, 1, v43')
    I('v_xor_b32 v40, v40, v44')
    I('v_lshlrev_b32 v40, 4, v40')
    I(f'v_add_u32 v{vDV0}, 256, v40')
    I(f'v_xor_b32 v{vDV1}, 128, v{vDV0}')
    I('s_and_b32 s5, s3, 1')
    I('s_lshl_b32 s5, s5, 3')
    I('v_xor_b32 v40, v43, v44')
    I('v_xor_b32 v40, s5, v40')
    I(f'v_lshlrev_b32 v{vDH0}, 4, v40')
    I(f'v_xor_b32 v{vDH1}, 64, v{vDH0}')
    I('s_lshl_b32 s5, s3, 5')
    I(f's_add_u32 s5, s5, {K2_SLOTS}')
    I(f'v_lshl_add_u32 v{vREC0}, v43, 2, s5')
    I('v_lshrrev_b32 v40, 2, v44')
    I(f'v_and_b32 v41, 3, v{vL}')
    I('v_lshlrev_b32 v42, 8, v41')
    I('v_lshl_add_u32 v42, v40, 12, v42')
    I('v_xor_b32 v45, v43, v44')
    I('v_lshl_add_u32 v42, v45, 4, v42')
    I(f'v_add_u32 v{vHB}, 3072, v42')
    for ks in range(1, 4):
        I(f'v_xor_b32 v{vHB+ks}, {64*ks}, v{vHB}')
    I('v_lshrrev_b32 v42, 1, v41')
    I('v_lshl_add_u32 v42, s3, 1, v42')
    I('v_and_b32 v45, 1, v43')
    I('v_lshlrev_b32 v45, 3, v45')
    I('v_lshl_add_u32 v45, v40, 1, v45')
    I('v_xor_b32 v42, v42, v45')
    I('v_lshlrev_b32 v42, 4, v42')
    I('v_and_b32 v45, 1, v41')
    I('v_lshl_add_u32 v42, v45, 3, v42')
    I('v_lshl_add_u32 v42, v40, 8, v42')
    I(f'v_lshl_add_u32 v{vVB}, v43, 12, v42')
    I(f'v_add_u32 v{vRB0}, {K2_RBF - 1024}, v{vL16}')
    I(f'v_lshlrev_b32 v{vGE0}, 4, v43')
    I(f'v_add_u32 v{vGE0}, {K2_GEO - GEOB}, v{vGE0}')
    I(f'v_lshl_or_b32 v{vNID0}, v44, 16, v44')
    I(f'v_mul_u32_u24 v{vSTA}, {RSTR}, v44')
    I(f'v_lshl_add_u32 v{vSTA}, v43, 3, v{vSTA}')
    I('s_lshl_b32 s5, s3, 5')
    I(f's_add_u32 s5, s5, {K2_STG}')
    I(f'v_add_u32 v{vSTA}, s5, v{vSTA}')
    I(f'v_add_u32 v{vSTR}, s{sSTW}, v{vL16}')
    I('v_xor_b32 v40, 256, v0')
    I(f'v_mov_b32 v{vGS}, {K2_SLOTS}')
    I(f'v_lshl_add_u32 v{vGS}, v40, 2, v{vGS}')
    I('v_lshrrev_b32 v41, 5, v40')
    I('v_and_b32 v42, 31, v40')
    I(f'v_mul_u32_u24 v45, {GEOB}, v41')
    I(f'v_add_u32 v45, {K2_GEO}, v45')
    I(f'v_lshl_add_u32 v{vGW}, v42, 2, v45')
    I('v_lshrrev_b32 v46, 4, v42')
    I('v_lshl_add_u32 v45, v46, 3, v45')
    I('v_and_b32 v40, 3, v42')
    I('v_lshl_add_u32 v45, v40, 1, v45')
    I('v_bfe_u32 v40, v42, 2, 2')
    I('v_lshl_add_u32 v45, v40, 4, v45')
    I(f'v_add_u32 v{vIW}, 384, v45')
    I(f'v_lshlrev_b32 v{vRW}, 10, v41')
    I(f'v_lshl_add_u32 v{vRW}, v44, 4, v{vRW}')
    I(f'v_lshl_add_u32 v{vRW}, v46, 3, v{vRW}')
    I(f'v_add_u32 v{vRW}, {K2_RBF}, v{vRW}')
    I('v_lshlrev_b32 v40, 2, v43')
    I('v_sub_u32 v40, v44, v40')
    I('v_add_u32 v40, 16, v40')
    I('v_lshl_or_b32 v40, v40, 16, v40')
    for r in range(2):
        k0 = 16 + 2 * r
        I(f'v_xor_b32 v41, {k0 | ((k0 + 1) << 16)}, v40')
        I(f'v_pk_sub_u16 v41, s{sONES}, v41 clamp')
        I(f'v_pk_mul_lo_u16 v41, s{sBF1}, v41')
        I(f'v_accvgpr_write_b32 a{aI + r}, v41')
    for r in range(16): I(f'v_mov_b32 v{ACC+r}, 0')
    I('v_lshlrev_b32 v40, 2, v47')
    I('v_add_u32 v41, -1, v40')
    I('v_add_u32 v42, 1, v40')
    I('v_add_u32 v43, 2, v40')
    mark(2)
    I('s_cmp_ge_u32 s3, 4')
    I('s_cbranch_scc1 k2_cw1')
    I('s_waitcnt vmcnt(14)')
    p.L('k2_cw1')
    I('s_cmp_lt_u32 s3, 6')
    I('s_cbranch_scc1 k2_cw2')
    I('s_waitcnt vmcnt(20)')
    p.L('k2_cw2')
    I('s_waitcnt vmcnt(22)')
    mark(3)
    idx = [41, 40, 42, 43]
    I('v_mov_b32_dpp v44, v48 quad_perm:[0,0,0,0] row_mask:0xf bank_mask:0xf')
    I(f'v_cmp_lt_u32 vcc, {CELLCAP}, v44')
    I(f'v_min_u32 v44, {CELLCAP}, v44')
    for k in range(4):
        m = MK + 2 * k
        I(f'v_cmp_lt_u32 s[{m}:{m+1}], v{idx[k]}, v44')
    I('s_cbranch_vccz k2_bin')
    I(f'v_mov_b32 v45, {K2_CNT}')
    I(f'ds_write_b32 v45, v{vONE} offset:32')
    p.L('k2_bin')
    I(f's_mov_b32 s{sT0}, {K2_CNT}')
    for r in range(4):
        I(f'v_bfe_u32 v{52+r}, v{48+r}, 28, 3')
        I(f'v_lshl_add_u32 v{52+r}, v{52+r}, 2, s{sT0}')
    for r in range(4):
        m = MK + 2 * r
        I(f's_mov_b64 exec, s[{m}:{m+1}]')
        I(f'ds_add_rtn_u32 v{56+r}, v{52+r}, v{vONE}')
    I('s_mov_b64 exec, -1')
    I(f'v_and_b32 v44, 15, v{vL}')
    I(f'v_lshl_add_u32 v45, v44, 2, s{sT0}')
    I('s_waitcnt lgkmcnt(0)')
    I('s_barrier')
    I('ds_read_b32 v40, v45')
    I(f'v_add_u32_dpp v{vENDS}, v40, v40 row_shr:1 row_mask:0xf bank_mask:0xf bound_ctrl:0')
    I(f'v_readlane_b32 s{sT0}, v40, 8')
    I(f'v_add_u32_dpp v{vENDS}, v{vENDS}, v{vENDS} row_shr:2 row_mask:0xf bank_mask:0xf bound_ctrl:0')
    I(f's_or_b32 s{sOVF}, s{sOVF}, s{sT0}')
    I(f'v_add_u32_dpp v{vENDS}, v{vENDS}, v{vENDS} row_shr:4 row_mask:0xf bank_mask:0xf bound_ctrl:0')
    I(f'v_sub_u32 v41, v{vENDS}, v40')
    I(f'v_add_u32 v41, {K2_SLOTS // 4}, v41')
    for r in range(4):
        I(f'ds_bpermute_b32 v{52+r}, v{52+r}, v41')
    I(f'v_readlane_b32 s{sT1}, v{vENDS}, 6')
    I(f'v_readlane_b32 s{sE0}, v{vENDS}, 0')
    I(f's_cmp_eq_u32 s{sPASS}, 0')
    I('s_cbranch_scc1 k2_place')
    I(f's_cmp_eq_u32 s{sT1}, 0')
    I('s_cbranch_scc1 k2_ovf_next')
    I('s_cmp_lt_u32 s3, 4')
    I('s_cbranch_scc1 k2_place')
    I('s_waitcnt vmcnt(0)')
    I('buffer_inv sc1')
    I(f's_mov_b32 s{sLIM}, s{sT1}')
    base_first()
    I(f's_mov_b32 s{sT1}, s{sLIM}')
    p.L('k2_place')
    I(f's_add_u32 s{sT}, s{sT1}, 31')
    I(f's_lshr_b32 s{sT}, s{sT}, 5')
    I(f's_add_u32 s{sT1}, s{sT1}, {K2_SLOTS // 4}')
    I(f'v_add_lshl_u32 v42, s{sT1}, v{vL}, 2')
    I(f'v_mov_b32 v43, {NULLREC}')
    I('ds_write_b32 v42, v43')
    for r in range(4):
        I(f'v_add_lshl_u32 v{52+r}, v{52+r}, v{56+r}, 2')
    for r in range(4):
        m = MK + 2 * r
        I(f's_mov_b64 exec, s[{m}:{m+1}]')
        I(f'ds_write_b32 v{52+r}, v{48+r}')
    I('s_mov_b64 exec, -1')
    I(f's_mov_b32 s{sI}, -1')
    I(f's_mov_b32 s{sLIM}, 0')
    I(f's_mov_b32 s{sEP}, 0')
    I(f's_mov_b32 s{sG}, 0')
    I(f's_mov_b32 s{sBUF}, 0')
    I(f's_mov_b32 s{sROW}, s{sROW0}')
    I(f's_lshl_b32 s{sDSL}, s3, 13')
    I(f's_mov_b32 s{sRSL}, {(NRING - 1) * SLOT}')
    I(f'v_mov_b32 v{vREC}, v{vREC0}')
    I(f'v_mov_b32 v{vNID}, v{vNID0}')
    I('s_waitcnt lgkmcnt(0)')
    I('s_barrier')
    mark(4)
    pos_loads('0')
    I('s_cmp_ge_u32 s3, 4')
    I('s_cbranch_scc1 k2_ginit')
    I(f's_min_u32 s{sT1}, s{sT}, {NRING}')
    p.L('k2_pre')
    I(f's_cmp_eq_u32 s{sT1}, 0')
    I('s_cbranch_scc1 k2_ginit')
    I(f's_sub_u32 s{sT1}, s{sT1}, 1')
    L0, L1, P, T = dma_list()
    for x in L0 + L1: I(x)
    for pc in P:
        for x in pc: I(x)
    for x in T: I(x)
    I('s_branch k2_pre')
    p.L('k2_reset')
    for x in masks(): I(x)
    for comp in (1, 2, 3, 0): I(seg(comp))
    I('s_branch k2_setdone')
    p.L('k2_ginit')
    mark(5)
    I(f's_cmp_eq_u32 s{sE0}, s{sEP}')
    I('s_cbranch_scc1 k2_adv')
    I(f's_cmp_lt_u32 s{sEP}, s{sLIM}')
    I('s_cbranch_scc1 k2_reset')
    p.L('k2_tile_next')
    I(f's_add_u32 s{sI}, s{sI}, 1')
    I(f's_add_u32 s{sLIM}, s{sLIM}, 32')
    I(f's_and_b32 s{sT0}, s{sI}, {CH - 1}')
    I('s_cbranch_scc1 k2_tile')
    I(f's_and_b32 s{sT1}, s{sT}, s{ROLE}')
    I(f's_cmp_eq_u32 s{sI}, 0')
    I('s_cbranch_scc1 k2_geo')
    I('s_waitcnt lgkmcnt(0)')
    I('s_barrier')
    pos_loads(f's{sI}')
    I(f's_mov_b32 s{sT1}, 0')
    p.L('k2_geo')
    wait_tiles(sT1, NRING)
    mark(7)
    geometry()
    I(f'v_mov_b32 v{vRB}, v{vRB0}')
    I(f'v_mov_b32 v{vGE}, v{vGE0}')
    I('s_waitcnt lgkmcnt(0)')
    I('s_barrier')
    p.L('k2_tile')
    mark(8)
    I(f'v_add_u32 v{vRB}, 1024, v{vRB}')
    I(f'v_add_u32 v{vGE}, {GEOB}, v{vGE}')
    I(f'ds_read_b128 {rng("a", aR, 4)}, v{vRB}')
    I(f'ds_read_b128 {rng("v", ID, 4)}, v{vGE} offset:384')
    L0, L1, P, T = dma_list()
    for x in L0: I(x)
    for c in range(3):
        for eb in range(2):
            I(f'ds_read_b128 {rng("v", RH + 8*c + 4*eb, 4)}, v{vGE} offset:{128*c + 64*eb}')
    I(f's_add_u32 s{sRSL}, s{sRSL}, {SLOT}')
    I(f's_cmp_ge_u32 s{sRSL}, {NRING*SLOT}')
    I(f's_cselect_b32 s{sRSL}, 0, s{sRSL}')
    for ks in range(4): I(f'v_add_u32 v{vHA+ks}, s{sRSL}, v{vHB+ks}')
    I(f'v_add_u32 v{vVA}, s{sRSL}, v{vVB}')
    I(f's_sub_u32 s{sT1}, s{sT}, s{sI}')
    I(f's_cmp_gt_u32 s{sT1}, {NRING}')
    I(f's_cselect_b64 vcc, s[{ROLE}:{ROLE+1}], 0')
    I(f's_sub_u32 s{sT1}, s{sT1}, 1')
    wf = []
    for G, W in ((2, WVR), (1, WVV), (0, WSS)):
        for eb in range(2):
            wf.append(m16(rng('v', W + 4 * eb, 4), rng('a', aR + 2 * eb, 2), rng('a', aWR(G), 2), '0'))
    weave(wf, masks() + L1, 3)
    I('s_cmp_ge_u32 s3, 4')
    I('s_cbranch_scc1 k2_b1')
    wait_tiles(sT1, NRING - 1)
    p.L('k2_b1')
    I('s_barrier')
    mark(9)
    for ks in range(4):
        for eb in range(2):
            I(f'ds_read_b128 {rng("a", aH + 4*(4*eb+ks), 4)}, v{vHA+ks} offset:{16384*eb}')
    for c in range(3):
        for eb in range(2):
            I(f'ds_read_b64_tr_b16 {rng("v", VP + 4*c + 2*eb, 2)}, v{vVA} offset:{16384*eb + 1024*c}')
    def pm(G, Pd):
        ms = []
        for ks in range(4):
            for eb in range(2):
                d = rng('v', Pd + 4 * eb, 4)
                ms.append(m32(d, rng('a', aH + 4 * (4 * eb + ks), 4), rng('a', aW(G, ks), 4), '0' if ks == 0 else d))
        return ms
    for m in pm(2, PVR): I(m)
    I('s_waitcnt lgkmcnt(0)')
    I('s_barrier')
    def site(k):
        def f():
            lab = p.uid('ds')
            I(f's_cbranch_vccz {lab}')
            for pc in P[2*k:2*k+2]:
                for x in pc: I(x)
            if k == 3:
                for x in T: I(x)
            p.L(lab)
        return f
    unp = []
    for j in range(12):
        unp.append(f'v_lshlrev_b32 v{VL+j}, 16, v{VP+j}')
        unp.append(f'v_and_b32 v{VP+j}, 0xffff0000, v{VP+j}')
    mvr = [f'v_mul_f32 v{PVR+k}, v{PVR+k}, v{WVR+k}' for k in range(8)]
    rhm = [f'v_mul_f32 v{RH+8*c+k}, v{RH+8*c+k}, v{PVR+k}' for c in range(3) for k in range(8)]
    f1 = [site(0)] + unp[:12] + [site(1)] + unp[12:] + mvr + [site(2)] + rhm[:12]
    weave(pm(1, PVV), f1, 6)
    mvv = [f'v_mul_f32 v{PVV+k}, v{PVV+k}, v{WVV+k}' for k in range(8)]
    fm = []
    for c in range(3):
        for k in range(8):
            j = 4 * c + (k >> 1)
            src = VL + j if (k & 1) == 0 else VP + j
            fm.append(f'v_fmac_f32 v{RH+8*c+k}, v{PVV+k}, v{src}')
        for j in range(4):
            fm.append(f'v_cvt_pk_bf16_f32 v{RH+8*c+j}, v{RH+8*c+2*j}, v{RH+8*c+2*j+1}')
    f2 = [site(3)] + rhm[12:] + mvv + fm[:24]
    weave(pm(0, PS), f2, 6)
    I(seg(1))
    for x in fm[24:30]: I(x)
    I(seg(2))
    for x in fm[30:]: I(x)
    for k in range(8): I(f'v_mul_f32 v{PS+k}, v{PS+k}, v{WSS+k}')
    I(seg(3))
    for j in range(4): I(f'v_cvt_pk_bf16_f32 v{PS+j}, v{PS+2*j}, v{PS+2*j+1}')
    I(seg(0))
    p.L('k2_setdone')
    mark(10)
    I(f's_cmp_gt_u32 s{sE0}, s{sLIM}')
    I('s_cbranch_scc1 k2_tile_next')
    p.L('k2_adv')
    mark(11)
    I(f'v_add_u32 v{vT}, s{sBUF}, v{vSTA}')
    I(f'v_add_u32 v{vT+1}, s{sBUF}, v{vSTR}')
    I('s_cmp_lt_u32 s3, 4')
    I('s_cbranch_scc1 k2_e1')
    I(f's_add_u32 s{sT0}, s{sG}, -1')
    I(f's_cmp_lt_u32 s{sT0}, {NG - 2}')
    I('s_cbranch_scc1 k2_w6')
    I('s_waitcnt vmcnt(3)')
    p.L('k2_w6')
    I('s_waitcnt vmcnt(6)')
    p.L('k2_e1')
    I('s_barrier')
    for comp in range(4):
        I(f'ds_read_b64 {rng("v", WVR + 2*comp, 2)}, v{vT} offset:{256*comp}')
    I(f's_add_u32 s{sG}, s{sG}, 1')
    I(f's_mov_b32 s{sEP}, s{sE0}')
    I(f'v_add_u32 v{vNID}, {16 | (16 << 16)}, v{vNID}')
    I(f'v_readlane_b32 s{sE0}, v{vENDS}, s{sG}')
    for comp in range(4):
        acc = rng('v', ACC + 4 * comp, 4)
        I(m16(acc, rng('a', aI, 2), rng('v', WVR + 2 * comp, 2), acc))
    I(f's_mov_b64 exec, s[{XM}:{XM+1}]')
    for comp in range(4):
        a = ACC + 4 * comp
        I(f'v_cvt_pk_bf16_f32 v{WVV+2*comp}, v{a}, v{a+1}')
        I(f'v_cvt_pk_bf16_f32 v{WVV+2*comp+1}, v{a+2}, v{a+3}')
        I(f'ds_write_b64 v{vT}, {rng("v", WVV + 2*comp, 2)} offset:{256*comp}')
    I('s_mov_b64 exec, -1')
    for r in range(16): I(f'v_mov_b32 v{ACC+r}, 0')
    I('s_waitcnt lgkmcnt(0)')
    I('s_barrier')
    I('s_cmp_lt_u32 s3, 4')
    I('s_cbranch_scc1 k2_adv_done')
    for j in range(4):
        I(f'ds_read_b128 {rng("v", WVR + 4*j, 4)}, v{vT+1} offset:{j * 4 * RSTR}')
    for j in range(4):
        if j == 3:
            I('s_cmp_ge_u32 s3, 6')
            I('s_cbranch_scc1 k2_st3')
        so = sROW
        if j:
            I(f's_add_u32 s{sX}, s{sROW}, {j * 4096}')
            so = sX
        I(f'buffer_store_dwordx4 {rng("v", WVR + 4*j, 4)}, v{vL16}, {rng("s", OUT, 4)}, s{so} offen')
    p.L('k2_st3')
    I(f's_cmp_ge_u32 s{sG}, {NG - 1}')
    I('s_cbranch_scc1 k2_adv_done')
    I('s_waitcnt lgkmcnt(0)')
    I(f's_add_u32 s{sT0}, s{sROW}, {2 * GN * 1024}')
    I(f's_add_u32 s{sT1}, s{sSTW}, s{sBUF}')
    base_dma(sT0, sT1)
    p.L('k2_adv_done')
    I(f's_add_u32 s{sROW}, s{sROW}, {GN * 1024}')
    I(f's_sub_u32 s{sBUF}, {STGB}, s{sBUF}')
    I(f's_cmp_lt_u32 s{sG}, {NG}')
    I('s_cbranch_scc1 k2_ginit')
    if dbg:
        mark(12)
        I('s_waitcnt vmcnt(0)')
        mark(13)
        srd(p, WS, 16, 17, 1 << 20, add=WS_PROF)
        I('s_lshl_b32 s4, s2, 3')
        I('s_add_u32 s4, s4, s3')
        I('s_lshl_b32 s4, s4, 8')
        I(f'v_lshlrev_b32 v40, 2, v{vL}')
        I(f'buffer_store_dword v39, v40, {rng("s", WS, 4)}, s4 offen')
        I('s_endpgm')
    I(f's_cmp_eq_u32 s{sOVF}, 0')
    I('s_cbranch_scc1 k2_exit')
    I(f's_cmp_lg_u32 s{sPASS}, 0')
    I('s_cbranch_scc1 k2_ovf_next')
    I(f's_mov_b32 s{sPASS}, 1')
    I(f's_mov_b32 s{sP}, -1')
    I(f's_mov_b32 s{sBLK}, 0')
    I(f's_mov_b32 s{sPCNT}, 0')
    I(f's_mov_b32 s{WS+2}, {WS_H}')
    srd(p, BASE, 14, 15, N * 1024)
    p.L('k2_ovf_next')
    I(f's_cmp_lt_u32 s{sBLK}, s{sPCNT}')
    I('s_cbranch_scc1 k2_ovf_blk')
    I(f's_add_u32 s{sP}, s{sP}, 1')
    I(f's_cmp_ge_u32 s{sP}, {NPROD}')
    I('s_cbranch_scc1 k2_exit')
    I(f's_lshl_b32 s{sT0}, s{sP}, 2')
    I(f's_add_u32 s{sT0}, s{sT0}, {WS_OVFCNT}')
    I(f's_load_dword s{sPCNT}, s[16:17], s{sT0}')
    I(f's_mov_b32 s{sBLK}, 0')
    I('s_waitcnt lgkmcnt(0)')
    I(f's_min_u32 s{sPCNT}, s{sPCNT}, 4096')
    I('s_branch k2_ovf_next')
    p.L('k2_ovf_blk')
    I('s_waitcnt lgkmcnt(0)')
    I('s_barrier')
    zero_cnt()
    I(f's_lshl_b32 s{sT0}, s{sP}, 12')
    I(f's_add_u32 s{sT0}, s{sT0}, s{sBLK}')
    I(f's_lshl_b32 s{sT0}, s{sT0}, 2')
    I(f's_add_u32 s{sT0}, s{sT0}, {WS_OVF}')
    I('v_lshlrev_b32 v40, 4, v0')
    I(f'buffer_load_dwordx4 v[48:51], v40, {rng("s", WS, 4)}, s{sT0} offen')
    I(f's_sub_u32 s{sT1}, s{sPCNT}, s{sBLK}')
    I(f's_min_u32 s{sT1}, s{sT1}, 1024')
    I(f's_add_u32 s{sBLK}, s{sBLK}, 1024')
    I('v_lshlrev_b32 v40, 2, v0')
    I(f's_movk_i32 s{sT0}, 147')
    I('s_waitcnt vmcnt(0) lgkmcnt(0)')
    I('s_barrier')
    for k in range(4):
        m = MK + 2 * k
        I(f'v_add_u32 v41, {k}, v40')
        I(f'v_cmp_gt_u32 s[{m}:{m+1}], s{sT1}, v41')
        I(f'v_lshrrev_b32 v42, 15, v{48+k}')
        I(f'v_subrev_u32 v42, s{sNB}, v42')
        I(f'v_cmp_gt_u32 vcc, {NP}, v42')
        I(f's_and_b64 s[{m}:{m+1}], s[{m}:{m+1}], vcc')
        I(f'v_mul_u32_u24 v43, s{sT0}, v42')
        I('v_lshrrev_b32 v43, 11, v43')
        I('v_lshl_add_u32 v42, v43, 1, v42')
        I(f'v_and_b32 v{48+k}, 0x7fff, v{48+k}')
        I(f'v_lshl_or_b32 v{48+k}, v42, 24, v{48+k}')
    I('s_branch k2_bin')
    p.L('k2_exit')
    I('s_endpgm')
    p.insert_waits()
    p.insert_nops()
    return p
```

```python
import sys
from consts import *
import k1, k2
HDR = open('gather_scatter__molecular_angular_painn__graph.s.ref').read().split('; Override launch')[0]
def desc(name, nfv, acc, sg=102):
    return f'''.amdhsa_kernel {name}
  .amdhsa_next_free_vgpr {nfv}
  .amdhsa_next_free_sgpr {sg}
  .amdhsa_accum_offset {acc}
  .amdhsa_group_segment_fixed_size 0
  .amdhsa_kernarg_size 88
  .amdhsa_user_sgpr_count 2
  .amdhsa_user_sgpr_kernarg_segment_ptr 1
  .amdhsa_system_sgpr_workgroup_id_x 1
.end_amdhsa_kernel
'''
def build(path, dbg=False):
    n1, n2 = 'painn_prep_kernel', 'painn_msg_kernel'
    o = HDR
    o += f'; @launch kernel={n1} grid=({K1_GRID},1,1) block=(1024,1,1) lds={K1_LDS}\n'
    o += f'; @launch kernel={n2} grid=({NCONS},1,1) block=(512,1,1) lds={K2_LDS}\n'
    o += '.amdgcn_target "amdgcn-amd-amdhsa--gfx950"\n.text\n'
    for n, g in ((n1, k1.gen_k1), (n2, k2.gen_k2)):
        o += f'.globl {n}\n.p2align 8\n.type {n},@function\n'
        o += g(n, dbg).text()
    o += '.section .rodata,"a"\n.p2align 6\n' + desc(n1, 128, 128) + '.p2align 6\n' + desc(n2, 256, 160)
    open(path, 'w').write(o)
if __name__ == '__main__':
    build(sys.argv[1] if len(sys.argv) > 1 else 'gather_scatter__molecular_angular_painn__graph.s', len(sys.argv) > 2)
```

```python
import struct
N = 25000; E = 400000
NCONS = 256; NPE = 128; ECH = 3125; CCAP = 40
NP = 98; NG = 7; GN = 14
WS_CELLS = 0
WS_HF = 0x400000; HFREP = 16; HFSTR = 4096
WS_H = 0x500000
WS_PROF = 0x4000000
def f32hex(x): return '0x%08x' % struct.unpack('<I', struct.pack('<f', x))[0]
SLOT = 32768
NRING = 3
RSTR = 1040
STGB = GN * RSTR
L_STG = NRING * SLOT
CH = 16
L_RBF = L_STG + 2 * STGB
PL = CH * 128
L_GEO = L_RBF + CH * 1024
L_SLOTS = L_GEO + 4 * PL
MAXREC = 2048
NSLOTS = MAXREC + 64
L_DPOS = L_SLOTS + NSLOTS * 4 + 16
L_CNT = (L_DPOS + 128 * 16 + 255) // 256 * 256
L_OVF = L_CNT + 64
LDS = L_OVF + NPE * 4
L_CELL = 65536
L_S = 32768
L_WR = 98304
L_W1 = L_WR + 12288
L_ECNT = L_W1 + 32768
NULLREC = N | (127 << 24)
WIN = 10
LIFE = 22
TMO = 400
assert LDS <= 163840, LDS
assert L_GEO % 256 == 0 or True
```

```python
from asmlib import *
from consts import *
from maps import *
from k3a import prologue
import k3b

def gen(name, dbg=0, force=0):
    p = Prog()
    p.auto_vm = False
    I = p.I
    def mark(i, clk=False):
        if not dbg: return
        I(f's_memtime s[{dT}:{dT+1}]' if clk else f's_memrealtime s[{dT}:{dT+1}]')
        I('s_waitcnt lgkmcnt(0)')
        I(f's_and_b32 s{dT}, s{dT}, 0x7ffffff')
        I(f's_or_b32 s{dT}, s{dT}, {i << 27}')
        I(f's_mov_b32 s{dM}, m0')
        I(f's_mov_b32 m0, s{dI}')
        I(f'v_writelane_b32 v39, s{dT}, m0')
        I(f's_mov_b32 m0, s{dM}')
        I(f's_add_u32 s{dI}, s{dI}, 1')
    c = prologue(p, name, mark, dbg, force)
    vWB, vWB2, vWRB, vCP, vSS, vI, vKQ = (c[k] for k in ('vWB', 'vWB2', 'vWRB', 'vCP', 'vSS', 'vI', 'vKQ'))
    L = k3b.Loop(p, mark, dbg)
    I(f's_mov_b32 s{XM}, 0x3fff3fff')
    I(f's_mov_b32 s{XM+1}, 0x3fff3fff')
    I(f's_xor_b32 s{sGW2}, s3, 4')
    I(f's_lshl_b32 s{sGW2}, s{sGW2}, 1')
    I('s_and_b32 s7, s3, 3')
    I(f's_add_u32 s{sROW0}, s{sNB}, s7')
    I(f's_lshl_b32 s{sROW0}, s{sROW0}, 10')
    I(f's_mul_i32 s{sSTW}, s7, {RSTR}')
    I(f's_add_u32 s{sSTW}, s{sSTW}, {L_STG}')
    I('s_cmp_lt_u32 s3, 4')
    I(f's_cselect_b64 s[{ROLE}:{ROLE+1}], -1, 0')
    I(f'v_lshrrev_b32 v90, 2, v{vI}')
    I(f'v_and_b32 v91, 1, v{vKQ}')
    I('v_lshl_or_b32 v91, v91, 2, v90')
    I('v_xor_b32 v91, s3, v91')
    I(f'v_lshl_add_u32 v91, v91, 5, v{vSS}')
    I(f'v_lshl_add_u32 v92, v{vKQ}, 3, v90')
    I(f's_movk_i32 s6, 768')
    I(f'v_mad_u32_u24 v{vWB}, v92, s6, v91')
    I(f'v_add_u32 v{vWB2}, {64 * 768}, v{vWB}')
    I(f'v_lshrrev_b32 v91, 1, v{vKQ}')
    I('v_lshl_or_b32 v91, v91, 2, v90')
    I('v_xor_b32 v91, s3, v91')
    I(f'v_lshl_add_u32 v91, v91, 5, v{vSS}')
    I(f'v_lshl_add_u32 v92, v{vKQ}, 2, v90')
    I(f'v_mad_u32_u24 v{vWRB}, v92, s6, v91')
    I(f'v_add_u32 v{vWRB}, {L_WR}, v{vWRB}')
    I(f'v_lshlrev_b32 v93, 1, v{vKQ}')
    I(f'v_xor_b32 v93, v93, v{vI}')
    I('v_lshlrev_b32 v93, 4, v93')
    I(f'v_add_u32 v{vDV0}, 256, v93')
    I(f'v_xor_b32 v{vDV1}, 128, v{vDV0}')
    I('s_and_b32 s6, s3, 1')
    I('s_lshl_b32 s6, s6, 3')
    I(f'v_xor_b32 v95, v{vKQ}, v{vI}')
    I('v_xor_b32 v93, s6, v95')
    I(f'v_lshlrev_b32 v{vDH0}, 4, v93')
    I(f'v_xor_b32 v{vDH1}, 64, v{vDH0}')
    I('s_lshl_b32 s6, s3, 5')
    I(f's_add_u32 s7, s6, {L_SLOTS}')
    I(f'v_lshl_add_u32 v{vREC0}, v{vKQ}, 2, s7')
    I(f'v_lshlrev_b32 v92, 5, v{vSS}')
    I('v_lshl_add_u32 v92, v90, 12, v92')
    I('v_lshl_add_u32 v92, v95, 4, v92')
    I(f'v_add_u32 v{vHB}, 3072, v92')
    for ks in range(1, 4):
        I(f'v_xor_b32 v{vHB+ks}, {64*ks}, v{vHB}')
    I(f'v_and_b32 v91, 1, v{vKQ}')
    I('v_lshl_or_b32 v91, v91, 2, v90')
    I('v_xor_b32 v91, s3, v91')
    I(f'v_lshl_add_u32 v91, v91, 5, v{vSS}')
    I('v_lshl_add_u32 v91, v90, 8, v91')
    I(f'v_lshl_add_u32 v{vVB}, v{vKQ}, 12, v91')
    I(f'v_add_u32 v{vRB0}, {L_RBF - 1024}, v{vL16}')
    I(f'v_lshlrev_b32 v{vGE0}, 4, v{vKQ}')
    I(f'v_add_u32 v{vGE0}, {L_GEO - 128}, v{vGE0}')
    I(f'v_lshl_or_b32 v{vNID0}, v{vI}, 16, v{vI}')
    I(f'v_mul_u32_u24 v{vSTA}, {RSTR}, v{vI}')
    I(f'v_lshl_add_u32 v{vSTA}, v{vKQ}, 3, v{vSTA}')
    I(f's_add_u32 s6, s6, {L_STG}')
    I(f'v_add_u32 v{vSTA}, s6, v{vSTA}')
    I(f'v_add_u32 v{vSTR}, s{sSTW}, v{vL16}')
    I('v_xor_b32 v91, 256, v0')
    I(f'v_mov_b32 v92, {L_GEO}')
    I(f'v_lshl_add_u32 v{vGW}, v91, 2, v92')
    I('v_lshrrev_b32 v93, 5, v91')
    I('v_bfe_u32 v94, v0, 4, 1')
    I('v_lshl_add_u32 v92, v93, 7, v92')
    I('v_lshl_add_u32 v92, v94, 3, v92')
    I('v_and_b32 v95, 3, v0')
    I('v_lshl_add_u32 v92, v95, 1, v92')
    I('v_lshl_add_u32 v92, v90, 4, v92')
    I(f'v_add_u32 v{vIW}, {3 * PL}, v92')
    I(f'v_lshlrev_b32 v{vRW}, 10, v93')
    I(f'v_lshl_add_u32 v{vRW}, v{vI}, 4, v{vRW}')
    I(f'v_lshl_add_u32 v{vRW}, v94, 3, v{vRW}')
    I(f'v_add_u32 v{vRW}, {L_RBF}, v{vRW}')
    I(f'v_lshlrev_b32 v91, 2, v{vKQ}')
    I(f'v_sub_u32 v91, v{vI}, v91')
    I('v_add_u32 v91, 16, v91')
    I('v_lshl_or_b32 v91, v91, 16, v91')
    for r in range(2):
        k0 = 16 + 2 * r
        I(f'v_xor_b32 v92, {k0 | ((k0 + 1) << 16)}, v91')
        I(f'v_pk_sub_u16 v92, s{sONES}, v92 clamp')
        I(f'v_pk_mul_lo_u16 v92, s{sBF1}, v92')
        I(f'v_accvgpr_write_b32 a{aI + r}, v92')
    I(f's_mov_b32 s{sX}, 0x80008000')
    I('s_memrealtime s[6:7]')
    mark(8)
    I('s_waitcnt vmcnt(0) lgkmcnt(0)')
    I('s_barrier')
    mark(9)
    I('s_cmp_lg_u32 s3, 7')
    I('s_cbranch_scc1 k_poll')
    I(f'v_mov_b32 v90, s{sSTAMP}')
    I(f'v_lshlrev_b32 v91, 12, v{vL}')
    I('s_lshl_b32 s8, s2, 2')
    I(f's_add_u32 s8, s8, {WS_HF}')
    I(f's_mov_b64 exec, {(1 << HFREP) - 1}')
    I(f'buffer_store_dword v90, v91, {rng("s", CE, 4)}, s8 offen sc1')
    I('s_mov_b64 exec, -1')
    def now_range():
        I('s_lshr_b64 s[6:7], s[6:7], 6')
        I(f's_sub_u32 s6, s6, s{sLO}')
        I('s_add_u32 s7, s6, 3')
    p.L('k_poll')
    now_range()
    for j in range(2):
        w = 40 + 4 * j; x = 90 + 2 * j
        I(f'v_lshrrev_b32 v{x}, 24, v{w+3}')
        I(f'v_lshlrev_b32 v{x}, v{vSS}, v{x}')
        I(f'v_or_b32 v{x+1}, v{w}, v{w+1}')
    for q in ('[1,0,3,2]', '[2,3,0,1]'):
        for j in range(2):
            x = 90 + 2 * j
            I(f'v_or_b32_dpp v{x}, v{x}, v{x} quad_perm:{q} row_mask:0xf bank_mask:0xf')
    for j in range(2):
        x = 90 + 2 * j
        I(f'v_subrev_u32 v{x}, s{sLO}, v{x}')
        I(f'v_and_or_b32 v{x}, v{x+1}, s{sX}, v{x}')
        I(f'v_cmp_le_u32 s[{64+2*j}:{65+2*j}], s7, v{x}')
    if force & 1: I('s_mov_b64 s[64:65], 1')
    I('s_or_b64 vcc, s[64:65], s[66:67]')
    I('s_cbranch_scc0 k_polled')
    I(f's_cmp_gt_u32 s6, {TMO}')
    I('s_cbranch_scc1 k_ptmo')
    I('s_sleep 4')
    for j in range(2):
        lab = p.uid('pj')
        I(f's_mov_b64 exec, s[{64+2*j}:{65+2*j}]')
        I(f's_cbranch_execz {lab}')
        I(f'buffer_load_dwordx4 v[{40+4*j}:{43+4*j}], v{vCP}, {rng("s", CE, 4)}, s{4+j} offen sc1')
        p.L(lab)
    I('s_mov_b64 exec, -1')
    I('s_memrealtime s[6:7]')
    I('s_waitcnt vmcnt(0) lgkmcnt(0)')
    I('s_branch k_poll')
    p.L('k_ptmo')
    for j in range(2):
        I(f'v_mov_b32 v{40+4*j}, 0')
        I(f'v_mov_b32 v{41+4*j}, 0')
        I(f'v_mov_b32 v{42+4*j}, 0xffff0000')
        I(f'v_mov_b32 v{43+4*j}, -1')
    I(f'v_mov_b32 v90, {L_CNT}')
    I(f'ds_write_b32 v90, v{vONE} offset:36')
    p.L('k_polled')
    mark(10)
    I(f's_mov_b32 s6, {L_DPOS}')
    I(f's_mov_b32 s{sNL}, 2')
    def g1(k):
        j, s = INST[k]; w = 40 + 4 * j; X = XI(k)
        if s == 4: I(f'v_and_b32 v{X+6}, 0x7fff, v{w+2}')
        elif s & 1: I(f'v_lshrrev_b32 v{X+6}, 16, v{w + (s >> 1)}')
        else: I(f'v_and_b32 v{X+6}, 0xffff, v{w + (s >> 1)}')
        I(f'v_mul_u32_u24 v{X+4}, 6, v{X+6}')
        I(f'v_and_b32 v{X+4}, -4, v{X+4}')
        I(f'buffer_load_dwordx2 v[{X+4}:{X+5}], v{X+4}, {rng("s", POS, 4)}, 0 offen')
        I(f'v_lshl_add_u32 v{X}, v{X+7}, 4, s6')
        I(f'ds_read_b128 v[{X}:{X+3}], v{X}')
        I(f'v_lshl_or_b32 v{X+6}, v{X+7}, 24, v{X+6}')
    def gid(k):
        j, s = INST[k]; w = 40 + 4 * j; X = XI(k); b = 10 + s
        I(f'v_bfe_i32 v{X+7}, v{w + (b >> 2)}, {8 * (b & 3)}, 8')
    for lv in range(5):
        gid(2 * lv); gid(2 * lv + 1)
        if lv >= 2:
            I(f'v_and_b32 v{vT}, v{XI(2*lv)+7}, v{XI(2*lv+1)+7}')
            I(f'v_cmp_le_i32 vcc, 0, v{vT}')
            I('s_cbranch_vccz k_g1')
            I(f's_mov_b32 s{sNL}, {lv + 1}')
        g1(2 * lv); g1(2 * lv + 1)
    p.L('k_g1')
    I(f'v_or_b32 v{vT}, v42, v46')
    I(f'v_and_b32 v{vT}, 0x8000, v{vT}')
    I(f'v_cmp_ne_u32 vcc, 0, v{vT}')
    I('s_cbranch_vccz k_g2')
    I(f'v_mov_b32 v{vT+1}, {L_CNT}')
    I(f'ds_write_b32 v{vT+1}, v{vONE} offset:32')
    I(f'v_lshrrev_b32 v{vT}, 3, v0')
    I(f'v_lshl_add_u32 v{vT+1}, v{vT}, 2, v{vT+1}')
    for j in range(2):
        I(f'v_bfe_u32 v{vT}, v{42+4*j}, 15, 1')
        I(f'ds_write_b32 v{vT+1}, v{vT} offset:{64 + 256*j}')
    p.L('k_g2')
    I('s_and_b32 s8, s2, 15')
    I('s_lshl_b32 s8, s8, 12')
    I(f's_add_u32 s8, s8, {WS_HF}')
    I('s_cmp_lg_u32 s3, 7')
    I('s_cbranch_scc1 k_g3')
    I(f'buffer_load_dwordx4 v[40:43], v{vL16}, {rng("s", CE, 4)}, s8 offen sc1')
    p.L('k_g3')
    for G in range(3):
        I(f'ds_read_b64_tr_b16 {rng("a", aWR(G), 2)}, v{vWRB} offset:{256*G}')
    for G in (2, 1, 0):
        for ks in range(4):
            for h in range(2):
                I(f'ds_read_b64_tr_b16 {rng("a", aW(G, ks) + 2*h, 2)}, v{vWB2 if ks >= 2 else vWB} offset:{(32*(ks & 1) + 4*h)*768 + 256*G}')
    I(f's_mov_b32 s6, {f32hex(24.1)}')
    mark(11)
    I('s_waitcnt vmcnt(0) lgkmcnt(0)')
    mark(12)
    def g2(k):
        X = XI(k); m = MK + 2 * k
        I(f'v_lshlrev_b32 v{X+7}, 4, v{X+6}')
        I(f'v_alignbit_b32 v{X+4}, v{X+5}, v{X+4}, v{X+7}')
        I(f'v_lshrrev_b32 v{X+5}, v{X+7}, v{X+5}')
        I(f'v_lshlrev_b32 v{X+7}, 16, v{X+4}')
        I(f'v_and_b32 v{X+4}, 0xffff0000, v{X+4}')
        I(f'v_lshlrev_b32 v{X+5}, 16, v{X+5}')
        I(f'v_sub_f32 v{X}, v{X+7}, v{X}')
        I(f'v_sub_f32 v{X+1}, v{X+4}, v{X+1}')
        I(f'v_sub_f32 v{X+2}, v{X+5}, v{X+2}')
        I(f'v_mul_f32 v{X+7}, v{X}, v{X}')
        I(f'v_fmac_f32 v{X+7}, v{X+1}, v{X+1}')
        I(f'v_fmac_f32 v{X+7}, v{X+2}, v{X+2}')
        I(f'v_cmp_gt_f32 s[{m}:{m+1}], s6, v{X+7}')
        I(f's_mov_b64 exec, s[{m}:{m+1}]')
        I(f'ds_add_rtn_u32 v{X+4}, v{X+3}, v{vONE}')
        I('s_mov_b64 exec, -1')
    for lv in range(5):
        if lv >= 2:
            I(f's_cmp_le_u32 s{sNL}, {lv}')
            I('s_cbranch_scc1 k_bin')
        g2(2 * lv); g2(2 * lv + 1)
    p.L('k_bin')
    I(f's_mov_b32 s{sT0}, {L_CNT}')
    I(f'v_and_b32 v{vT}, 15, v{vL}')
    I(f'v_lshl_add_u32 v{vT+1}, v{vT}, 2, s{sT0}')
    I('s_waitcnt lgkmcnt(0)')
    I('s_barrier')
    mark(13)
    I(f'ds_read_b32 v{vT}, v{vT+1}')
    I(f'v_add_u32_dpp v{vENDS}, v{vT}, v{vT} row_shr:1 row_mask:0xf bank_mask:0xf bound_ctrl:0')
    I(f'v_readlane_b32 s{sT0}, v{vT}, 8')
    I(f'v_add_u32_dpp v{vENDS}, v{vENDS}, v{vENDS} row_shr:2 row_mask:0xf bank_mask:0xf bound_ctrl:0')
    I(f'v_readlane_b32 s{sX}, v{vT}, 9')
    I(f'v_add_u32_dpp v{vENDS}, v{vENDS}, v{vENDS} row_shr:4 row_mask:0xf bank_mask:0xf bound_ctrl:0')
    I(f's_or_b32 s{sOVF}, s{sOVF}, s{sT0}')
    I(f'v_sub_u32 v{vT+2}, v{vENDS}, v{vT}')
    I(f'v_add_u32 v{vT+2}, {L_GEO // 4}, v{vT+2}')
    for k in range(4):
        I(f'ds_bpermute_b32 v{XI(k)+5}, v{XI(k)+3}, v{vT+2}')
    I(f'v_readlane_b32 s{sT1}, v{vENDS}, 6')
    I(f's_cmp_eq_u32 s{sPASS}, 0')
    I('s_cbranch_scc1 k_main')
    I(f's_mov_b64 s[{RV}:{RV+1}], 0')
    I(f's_cmp_eq_u32 s{sT1}, 0')
    I('s_cbranch_scc1 k_ovf_next')
    I('s_branch k_place')
    p.L('k_all')
    I(f'v_and_b32 v{vT}, 127, v0')
    I(f'v_mov_b32 v{vT+1}, {L_OVF}')
    I(f'v_lshl_add_u32 v{vT+1}, v{vT}, 2, v{vT+1}')
    I(f'ds_write_b32 v{vT+1}, v{vONE}')
    I(f's_mov_b32 s{sOVF}, 1')
    I(f's_mov_b32 s{sT1}, 0')
    I(f'v_mov_b32 v{vENDS}, 0')
    I(f's_mov_b32 s{sNL}, 0')
    I('s_branch k_place')
    p.L('k_main')
    I(f's_cmp_le_u32 s{sT1}, {CH * 32 - 64}')
    I(f's_cselect_b64 s[{RV}:{RV+1}], -1, 0')
    I(f's_cmp_gt_u32 s{sT1}, {MAXREC}')
    I(f's_cselect_b32 s{sX}, 1, s{sX}')
    I(f's_cmp_lg_u32 s{sX}, 0')
    I('s_cbranch_scc1 k_all')
    p.L('k_place')
    I(f's_add_u32 s{sT}, s{sT1}, 31')
    I(f's_lshr_b32 s{sT}, s{sT}, 5')
    I(f's_add_u32 s{sT1}, s{sT1}, {L_GEO // 4}')
    I(f'v_add_lshl_u32 v{vT}, s{sT1}, v{vL}, 2')
    I(f'v_mov_b32 v{vT+1}, {NULLREC}')
    I(f'v_mov_b32 v{vT+3}, 0')
    I(f'ds_write_b32 v{vT}, v{vT+1} offset:{4 * PL}')
    I(f's_mov_b64 exec, s[{RV}:{RV+1}]')
    I(f'ds_write2st64_b32 v{vT}, v{vT+3}, v{vT+3} offset0:0 offset1:{PL // 256}')
    I(f'ds_write_b32 v{vT}, v{vT+3} offset:{2 * PL}')
    I('s_mov_b64 exec, -1')
    def g3(k):
        X = XI(k); m = MK + 2 * k
        I(f'v_add_lshl_u32 v{X+5}, v{X+5}, v{X+4}, 2')
        I(f's_mov_b64 exec, s[{m}:{m+1}]')
        I(f'ds_write_b32 v{X+5}, v{X+6} offset:{4 * PL}')
        I(f's_and_b64 exec, exec, s[{RV}:{RV+1}]')
        I(f'ds_write2st64_b32 v{X+5}, v{X}, v{X+1} offset0:0 offset1:{PL // 256}')
        I(f'ds_write_b32 v{X+5}, v{X+2} offset:{2 * PL}')
        I('s_mov_b64 exec, -1')
    I(f's_cmp_eq_u32 s{sNL}, 0')
    I('s_cbranch_scc1 k_placed')
    for lv in range(2, 5):
        I(f's_cmp_le_u32 s{sNL}, {lv}')
        I('s_cbranch_scc1 k_p0')
        for k in (2 * lv, 2 * lv + 1): I(f'ds_bpermute_b32 v{XI(k)+5}, v{XI(k)+3}, v{vT+2}')
        I('s_waitcnt lgkmcnt(0)')
        g3(2 * lv); g3(2 * lv + 1)
    p.L('k_p0')
    I('s_waitcnt lgkmcnt(0)')
    for k in range(4): g3(k)
    p.L('k_placed')
    I(f's_xor_b32 s{sT0}, s3, 7')
    I(f's_or_b32 s{sT0}, s{sT0}, s{sPASS}')
    I('s_cbranch_scc1 k_hok')
    p.L('k_hpoll')
    I('s_memrealtime s[6:7]')
    for r in range(4): I(f'v_subrev_u32 v{44+r}, s{sLO}, v{40+r}')
    I('v_max3_u32 v44, v44, v45, v46')
    I('v_max_u32 v44, v44, v47')
    I('s_waitcnt lgkmcnt(0)')
    now_range()
    I('v_cmp_le_u32 vcc, s7, v44')
    if force & 2: I('s_mov_b64 vcc, 1')
    I('s_cbranch_vccz k_hok')
    I(f's_cmp_gt_u32 s6, {TMO}')
    I('s_cbranch_scc1 k_htmo')
    I('s_sleep 2')
    I(f'buffer_load_dwordx4 v[40:43], v{vL16}, {rng("s", CE, 4)}, s8 offen sc1')
    I('s_waitcnt vmcnt(0)')
    I('s_branch k_hpoll')
    p.L('k_htmo')
    I(f'v_mov_b32 v44, {L_CNT}')
    I(f'ds_write_b32 v44, v{vONE} offset:40')
    p.L('k_hok')
    for q in range(8):
        I(f's_lshl_b32 s{FR+2*q}, s{FRR+q}, 16')
        I(f's_and_b32 s{FR+2*q+1}, s{FRR+q}, 0xffff0000')
    I(f'v_readlane_b32 s{sE0}, v{vENDS}, 0')
    I(f's_mov_b32 s{sI}, -1')
    I(f's_mov_b32 s{sLIM}, 0')
    I(f's_mov_b32 s{sEP}, 0')
    I(f's_mov_b32 s{sG}, 0')
    I(f's_mov_b32 s{sBUF}, 0')
    I(f's_mov_b32 s{sROW}, s{sROW0}')
    I(f's_lshl_b32 s{sDSL}, s3, 13')
    I(f's_mov_b32 s{sRSL}, {(NRING - 1) * SLOT}')
    I(f'v_mov_b32 v{vREC}, v{vREC0}')
    I(f'v_mov_b32 v{vNID}, v{vNID0}')
    I(f'v_mov_b32 v{vT+1}, {L_CNT}')
    mark(14)
    I('s_waitcnt lgkmcnt(0)')
    I('s_barrier')
    mark(15)
    I(f'ds_read_b32 v{vT+1}, v{vT+1} offset:40')
    I(f'v_cmp_ne_u32 vcc, 0, v{vT+1}')
    I('s_cbranch_vccnz k_hfb')
    p.L('k_hdone')
    L.body()
    p.L('k_hfb')
    I(f's_mov_b32 s{sNODE}, {-NP}')
    p.L('k_hfb_next')
    I(f's_add_u32 s{sNODE}, s{sNODE}, {NP}')
    I(f's_cmp_lt_u32 s{sNODE}, {N}')
    I('s_cbranch_scc1 k_hfb_go')
    I(f's_mov_b32 s{SV+2}, {N * 1024}')
    I(f's_mov_b32 s{HS+2}, {N * 256}')
    I('s_waitcnt vmcnt(0)')
    I('s_barrier')
    I('s_branch k_hdone')
    p.L('k_hfb_go')
    c['s_loads']()
    I('s_waitcnt vmcnt(0)')
    I('s_barrier')
    c['node_task'](False)
    I('s_branch k_hfb_next')
    p.L('k_exit')
    I('s_cmp_lg_u32 s3, 0')
    I('s_cbranch_scc1 k_end')
    p.L('k_life')
    I('s_memrealtime s[6:7]')
    I('s_waitcnt lgkmcnt(0)')
    I('s_lshr_b64 s[6:7], s[6:7], 6')
    I(f's_sub_u32 s6, s6, s{sSTAMP}')
    I(f's_cmp_ge_u32 s6, {LIFE}')
    I('s_cbranch_scc1 k_end')
    I('s_sleep 8')
    I('s_branch k_life')
    p.L('k_end')
    I('s_endpgm')
    p.insert_waits()
    p.insert_nops()
    return p
```

```python
from asmlib import *
from consts import *
from maps import *

def prologue(p, name, mark, dbg, force=0):
    I = p.I
    W2O = (136, 137, 138); vAB, vHS, vWB, vWB2, vWRB, vCP, vSS, vI, vKQ = range(139, 148)
    vPF = 148; vSF = 152; vX = 153; vDP = 28; vSB = 38
    SRC, DST, W1, W2, WR = 64, 68, 72, 76, 80
    def consts():
        I(f's_mov_b32 s{sOVF}, 0')
        I(f's_mov_b32 s{sPASS}, 0')
        I(f's_mov_b32 s{sONES}, 0x00010001')
        I(f's_mov_b32 s{sBF1}, 0x3f803f80')
        I(f'v_lshrrev_b32 v90, 2, v{vI}')
        I(f'v_and_b32 v91, 1, v{vKQ}')
        I('v_lshl_or_b32 v91, v91, 2, v90')
        I(f'v_lshl_add_u32 v92, v{vKQ}, 3, v90')
        I(f'v_and_b32 v93, 3, v{vI}')
        I('v_lshlrev_b32 v93, 3, v93')
        I('s_and_b32 s5, s3, 1')
        I('s_lshl_b32 s6, s5, 2')
        I('v_xor_b32 v94, s6, v91')
        I('v_lshl_add_u32 v94, v94, 5, v93')
        I('v_lshl_add_u32 v94, v92, 8, v94')
        I(f'v_add_u32 v{vAB}, {L_W1}, v94')
        I(f'v_and_b32 v94, 1, v{vKQ}')
        I('v_lshlrev_b32 v94, 5, v94')
        I(f'v_lshrrev_b32 v95, 1, v{vKQ}')
        I('v_lshl_or_b32 v94, v95, 4, v94')
        I(f'v_lshl_or_b32 v94, v{vI}, 8, v94')
        I('s_lshl_b32 s5, s5, 7')
        I(f'v_or_b32 v{vHS}, s5, v94')
        I(f'v_lshl_add_u32 v94, s3, 2, v{vKQ}')
        for j in range(3):
            if j: I('v_add_u32 v94, 32, v94')
            I('v_mul_u32_u24 v96, 171, v94')
            I('v_bfe_u32 v97, v96, 9, 2')
            I('v_bfe_u32 v96, v96, 12, 1')
            I('v_lshl_or_b32 v97, v96, 2, v97')
            I('v_lshlrev_b32 v97, 5, v97')
            I(f'v_xor_b32 v{W2O[j]}, v97, v87')
        I(f'v_xor_b32 v94, v{vKQ}, v{vI}')
        I('v_lshlrev_b32 v94, 4, v94')
        I(f'v_lshl_or_b32 v94, v{vI}, 8, v94')
        I('s_lshr_b32 s5, s3, 1')
        I('s_lshl_b32 s5, s5, 13')
        I(f's_add_u32 s5, s5, {L_S}')
        I(f'v_add_u32 v{vSB}, s5, v94')
    p.L(name)
    I(f's_cmp_ge_u32 s2, {NCONS}')
    I('s_cbranch_scc1 k_end')
    I('s_load_dwordx16 s[8:23], s[0:1], 0')
    I('s_memrealtime s[6:7]')
    I('s_load_dwordx2 s[24:25], s[0:1], 64')
    I('s_load_dwordx2 s[26:27], s[0:1], 80')
    I('v_lshrrev_b32 v40, 6, v0')
    I(f'v_and_b32 v{vL}, 63, v0')
    I('v_readfirstlane_b32 s3, v40')
    I(f'v_and_b32 v{vI}, 15, v0')
    I(f'v_bfe_u32 v{vKQ}, v0, 4, 2')
    I('v_mul_u32_u24 v56, 12, v0')
    I(f'v_lshlrev_b32 v{vL16}, 4, v{vL}')
    I(f's_mul_i32 s{sNB}, s2, {NP}')
    I(f's_mul_i32 s4, s2, {ECH * 4}')
    I('v_lshlrev_b32 v87, 4, v0')
    I(f'v_and_b32 v{vSS}, 3, v0')
    I(f'v_lshlrev_b32 v{vSS}, 3, v{vSS}')
    I(f'v_mov_b32 v{vONE}, 1')
    I('v_mov_b32 v80, 0')
    if dbg:
        I(f's_mov_b32 s{dI}, 0')
        I('v_mov_b32 v39, 0')
    I(f's_mov_b32 s{sNODE}, s{sNB}')
    I(f's_add_u32 s{sX}, s4, 6144')
    I('s_waitcnt lgkmcnt(0)')
    I('s_lshr_b64 s[6:7], s[6:7], 6')
    I(f's_mov_b32 s{sSTAMP}, s6')
    I(f's_sub_u32 s{sLO}, s6, {WIN}')
    I(f's_cmp_ge_u32 s2, {NPE}')
    I('s_cbranch_scc1 k_noe1')
    srd(p, DST, 14, 15, E * 4)
    srd(p, SRC, 12, 13, E * 4)
    I(f'buffer_load_dwordx3 v[48:50], v56, {rng("s", DST, 4)}, s4 offen')
    I(f'buffer_load_dwordx3 v[52:54], v56, {rng("s", DST, 4)}, s{sX} offen')
    I('s_cmp_lg_u32 s3, 7')
    I('s_cbranch_scc1 k_e0')
    I('s_add_u32 s5, s4, 12288')
    I(f'v_lshlrev_b32 v57, 2, v{vL}')
    I(f'buffer_load_dword v51, v57, {rng("s", DST, 4)}, s5 offen')
    I(f'buffer_load_dword v43, v57, {rng("s", SRC, 4)}, s5 offen')
    p.L('k_e0')
    I(f'buffer_load_dwordx3 v[40:42], v56, {rng("s", SRC, 4)}, s4 offen')
    I(f'buffer_load_dwordx3 v[44:46], v56, {rng("s", SRC, 4)}, s{sX} offen')
    I('v_mov_b32 v81, 0')
    I('v_mov_b32 v82, 0xffff0000')
    I(f'v_lshrrev_b32 v83, v{vSS}, s{sSTAMP}')
    I('v_lshlrev_b32 v83, 24, v83')
    I('v_or_b32 v83, 0xffffff, v83')
    I(f'v_add_u32 v84, {L_CELL}, v87')
    for j in range(4):
        I(f'ds_write_b128 v84, v[80:83] offset:{8192*j}')
    I('v_min_u32 v58, 256, v0')
    I(f'v_mov_b32 v88, {L_ECNT}')
    I('v_lshl_add_u32 v58, v58, 2, v88')
    I('ds_write_b32 v58, v80')
    I('s_waitcnt lgkmcnt(0)')
    I('s_barrier')
    p.L('k_noe1')
    mark(30, True)
    mark(1)
    I(f'v_lshlrev_b32 v{vX}, 1, v{vKQ}')
    I(f'v_xor_b32 v{vX}, v{vX}, v{vI}')
    I(f'v_lshlrev_b32 v{vX}, 4, v{vX}')
    I(f'v_lshl_or_b32 v{vX}, v{vKQ}, 8, v{vX}')
    I(f'v_xor_b32 v{vX+1}, 128, v{vX}')
    I(f'v_lshl_add_u32 v{vSF}, s3, 2, v{vKQ}')
    I(f'v_xor_b32 v58, v{vSF}, v{vI}')
    I('v_and_b32 v58, 15, v58')
    I('v_lshlrev_b32 v58, 4, v58')
    I(f'v_lshl_or_b32 v{vSF}, v{vSF}, 10, v58')
    srd(p, SV, 8, 9, N * 1024)
    srd(p, HS, 26, 27, N * 256, add=WS_H)
    srd(p, W1, 18, 19, 128 * 256)
    srd(p, POS, 10, 11, N * 6)
    srd(p, W2, 20, 21, 128 * 768)
    srd(p, WR, 22, 23, 16 * 768)
    I(f's_load_dwordx8 s[{FRR}:{FRR+7}], s[16:17], 0')
    def s_loads():
        lab = p.uid('sl')
        I(f's_add_u32 s{sT0}, s{sNODE}, {NP}')
        I(f's_min_u32 s{sT0}, s{sT0}, {N}')
        I(f's_lshl_b32 s{SV+2}, s{sT0}, 10')
        I(f's_lshl_b32 s{HS+2}, s{sT0}, 8')
        I(f's_lshl_b32 s{sT1}, s{sNODE}, 10')
        I(f's_lshl_b32 s{sT0}, s3, 10')
        I('s_cmp_lg_u32 s3, 0')
        I(f's_cbranch_scc1 {lab}')
        I(f's_mov_b32 m0, {L_S + 24576}')
        I(f's_add_u32 s{sX}, s{sT1}, {96 * 1024}')
        I(f'buffer_load_dwordx4 v{vSF}, {rng("s", SV, 4)}, s{sX} offen lds')
        p.L(lab)
        for m in range(3):
            I(f's_add_u32 m0, s{sT0}, {L_S + 8192 * m}')
            if m: I(f's_add_u32 s{sT1}, s{sT1}, {32 * 1024}')
            I(f'buffer_load_dwordx4 v{vSF}, {rng("s", SV, 4)}, s{sT1} offen lds')
    I('s_bfe_u32 s5, s2, 0x50003')
    I('s_cmp_ge_u32 s3, 5')
    I('s_cbranch_scc1 k_pf1')
    I('s_mul_i32 s5, s5, 4688')
    I(f'buffer_load_dwordx4 v[{vPF}:{vPF+3}], v87, {rng("s", POS, 4)}, s5 offen')
    I('s_branch k_pf2')
    p.L('k_pf1')
    I('s_mul_i32 s6, s5, 3072')
    I('s_sub_u32 s6, s6, 5120')
    I('v_add_u32 v58, s6, v87')
    I(f'buffer_load_dwordx4 v[{vPF}:{vPF+3}], v58, {rng("s", W2, 4)}, 0 offen')
    I('s_cmp_lg_u32 s3, 6')
    I('s_cbranch_scc1 k_pf2')
    I('s_mul_i32 s5, s5, 384')
    I(f'v_lshlrev_b32 v58, 3, v{vL}')
    I(f'buffer_load_dwordx2 v[{vX+5}:{vX+6}], v58, {rng("s", WR, 4)}, s5 offen')
    p.L('k_pf2')
    I('s_lshl_b32 s5, s3, 12')
    I(f's_add_u32 m0, s5, {L_W1}')
    for j in range(4):
        I(f'buffer_load_dwordx4 v{vX + (j >> 1)}, {rng("s", W1, 4)}, s5 offen offset:{1024*j} lds')
    s_loads()
    I('s_cmp_lg_u32 s3, 7')
    I('s_cbranch_scc1 k_nodp1')
    for h in range(2):
        I(f'v_lshlrev_b32 v{vX+2}, 1, v{vKQ}')
        I(f'v_sub_u32 v{vX+2}, v{vL}, v{vX+2}')
        I(f'v_add_u32 v{vX+2}, s{sNB}, v{vX+2}')
        if h: I(f'v_add_u32 v{vX+2}, 56, v{vX+2}')
        I(f'v_mul_u32_u24 v{vX+3}, 6, v{vX+2}')
        I(f'v_and_b32 v{vX+3}, -4, v{vX+3}')
        I(f'buffer_load_dwordx2 v[{vDP+2*h}:{vDP+2*h+1}], v{vX+3}, {rng("s", POS, 4)}, 0 offen')
    I(f'v_lshlrev_b32 v{vX+2}, 4, v{vX+2}')
    p.L('k_nodp1')
    mark(2)
    srd(p, CE, 26, 27, WS_H)
    srd(p, BASE, 8, 9, N * 1024)
    srd(p, OUT, 24, 25, N * 1024)
    I('v_min_u32 v58, 143, v0')
    I(f'v_mov_b32 v59, {L_CNT}')
    I('v_lshl_add_u32 v58, v58, 2, v59')
    I('ds_write_b32 v58, v80')
    consts()
    I(f's_cmp_ge_u32 s2, {NPE}')
    I('s_cbranch_scc1 k_noe2')
    I(f's_movk_i32 s{sT0}, 10700')
    I(f's_movk_i32 s{sT1}, {-NP}')
    I(f's_movk_i32 s{sX}, 147')
    I(f's_mov_b32 s6, {L_ECNT}')
    I(f's_mov_b32 s7, {L_CELL}')
    I('v_mov_b32 v85, 0')
    I('s_waitcnt vmcnt(10)')
    mark(3)
    def e1(k):
        d = 48 + k
        I(f'v_mul_u32_u24 v{56+k}, s{sT0}, v{d}')
        I(f'v_lshrrev_b32 v{56+k}, 20, v{56+k}')
        I(f'v_lshl_add_u32 v{72+k}, v{56+k}, 2, s6')
        I(f'ds_add_rtn_u32 v{72+k}, v{72+k}, v{vONE}')
        I(f'v_mad_i32_i24 v{64+k}, v{56+k}, s{sT1}, v{d}')
        I(f'v_mul_u32_u24 v{d}, s{sX}, v{64+k}')
        I(f'v_lshrrev_b32 v{d}, 11, v{d}')
        I(f'v_lshl_add_u32 v{64+k}, v{d}, 1, v{64+k}')
        I(f'v_lshl_add_u32 v{56+k}, v{56+k}, 7, s7')
    def e2(k):
        d = 48 + k
        I(f'v_and_b32 v{d}, 7, v{72+k}')
        I(f'v_lshl_add_u32 v{56+k}, v{d}, 4, v{56+k}')
        I(f'v_lshrrev_b32 v{d}, 3, v{72+k}')
        I(f'v_min_u32 v{d}, 5, v{d}')
        I(f'v_max_u32 v85, v85, v{d}')
        I(f'v_add_u32 v{56+k}, v{56+k}, v{d}')
        I(f'ds_write_b8 v{56+k}, v{64+k} offset:10')
        I(f'v_add_u32 v{56+k}, v{56+k}, v{d}')
        I(f'ds_write_b16 v{56+k}, v{40+k}')
    KS = (0, 1, 2, 4, 5, 6)
    for k in KS: e1(k)
    I('s_waitcnt vmcnt(8)')
    for k in KS: e2(k)
    I('s_cmp_lg_u32 s3, 7')
    I('s_cbranch_scc1 k_e1')
    I(f's_mov_b32 exec_hi, {(1 << (ECH - 3072 - 32)) - 1}')
    e1(3); e2(3)
    I('s_mov_b64 exec, -1')
    p.L('k_e1')
    I('v_cmp_lt_u32 vcc, 4, v85')
    I('s_cbranch_vccz k_noe2')
    I(f'ds_write_b32 v88, v{vONE} offset:1024')
    p.L('k_noe2')
    mark(4)
    I('s_waitcnt vmcnt(0) lgkmcnt(0)')
    I('s_barrier')
    mark(5)
    I(f's_cmp_ge_u32 s2, {NPE}')
    I('s_cbranch_scc1 k_noe3')
    I('ds_read_b32 v85, v88 offset:1024')
    for j in range(4):
        I(f'ds_read_b128 v[{40+4*j}:{43+4*j}], v84 offset:{8192*j}')
    I('s_lshl_b32 s4, s2, 15')
    I('v_cmp_ne_u32 vcc, 0, v85')
    I('s_cbranch_vccz k_e2')
    I('v_lshrrev_b32 v86, 3, v0')
    I('v_lshl_add_u32 v86, v86, 2, v88')
    I('v_mov_b32 v82, 0xffff8000')
    for j in range(4):
        I(f'ds_read_b32 v85, v86 offset:{256*j}')
        I('s_waitcnt lgkmcnt(0)')
        I(f'v_cmp_lt_u32 vcc, {CCAP}, v85')
        for r in range(4):
            I(f'v_cndmask_b32 v{40+4*j+r}, v{40+4*j+r}, v{80+r}, vcc')
    p.L('k_e2')
    for j in range(4):
        if j: I('s_add_u32 s4, s4, 8192')
        I(f'buffer_store_dwordx4 v[{40+4*j}:{43+4*j}], v87, {rng("s", CE, 4)}, s4 offen sc1')
    p.L('k_noe3')
    mark(6)
    def node_task(main):
        AF = 72; AC = 40
        for ks in range(4):
            b = vSB
            if ks:
                I(f'v_xor_b32 v{vX+3+ks}, {64*ks}, v{vSB}'); b = vX + 3 + ks
            for t in range(2):
                I(f'ds_read_b128 {rng("a", aH + 16*t + 4*ks, 4)}, v{b} offset:{4096*t}')
        for T in range(4):
            b = vAB
            if T:
                I(f'v_xor_b32 v{vX+3+T}, {32*T}, v{vAB}'); b = vX + 3 + T
            for ks in range(4):
                for h in range(2):
                    I(f'ds_read_b64_tr_b16 {rng("v", AF + 16*T + 4*ks + 2*h, 2)}, v{b} offset:{(32*ks + 4*h)*256}')
        I(f's_lshr_b32 s{sT0}, s3, 1')
        I(f's_lshl_b32 s{sT0}, s{sT0}, 5')
        I(f's_add_u32 s{sT0}, s{sT0}, s{sNODE}')
        I(f's_lshl_b32 s{sT0}, s{sT0}, 8')
        I(f's_add_u32 s{sT1}, s{sT0}, 4096')
        I(f's_mov_b32 s7, {f32hex(-1.4426950408889634)}')
        I('s_lshl_b32 s5, s3, 10')
        def w2site(js, wr=False):
            if not main: return
            for j in js:
                I(f's_add_u32 m0, s5, {8192*j}' if j else 's_mov_b32 m0, s5')
                I(f's_mov_b32 s6, {8192*j}')
                I(f'buffer_load_dwordx4 v{W2O[j % 3]}, {rng("s", W2, 4)}, s6 offen lds')
            if wr:
                lab = p.uid('ws')
                I(f's_add_u32 m0, s5, {L_WR}')
                I(f'buffer_load_dwordx4 v{W2O[0]}, {rng("s", WR, 4)}, 0 offen lds')
                I('s_cmp_ge_u32 s3, 4')
                I(f's_cbranch_scc1 {lab}')
                I(f's_add_u32 m0, s5, {L_WR + 8192}')
                I('s_movk_i32 s6, 8192')
                I(f'buffer_load_dwordx4 v{W2O[1]}, {rng("s", WR, 4)}, s6 offen lds')
                p.L(lab)
        w2site([0, 1, 2, 3])
        for T in range(4):
            for ks in range(4):
                for t in range(2):
                    d = rng('v', AC + 16 * t + 4 * T, 4)
                    I(m32(d, rng('v', AF + 16*T + 4*ks, 4), rng('a', aH + 16*t + 4*ks, 4), '0' if ks == 0 else d))
            if T == 0: I('s_barrier')
            if T == 1: w2site([8, 9, 10])
        def silu(t, sites):
            a = AC + 16 * t; x = AF
            for i in range(16): I(f'v_mul_f32 v{x+i}, s7, v{a+i}')
            for i in range(16): I(f'v_exp_f32 v{x+i}, v{x+i}')
            if sites: w2site([11, 4, 5])
            for i in range(16): I(f'v_add_f32 v{x+i}, 1.0, v{x+i}')
            for i in range(16): I(f'v_rcp_f32 v{x+i}, v{x+i}')
            if sites: w2site([6, 7], True)
            for i in range(16): I(f'v_mul_f32 v{x+i}, v{x+i}, v{a+i}')
            for i in range(8): I(f'v_cvt_pk_bf16_f32 v{a+i}, v{x+2*i}, v{x+2*i+1}')
            for m in range(2):
                for r in range(2): I(f'v_permlane16_swap_b32 v{a+4*m+r}, v{a+4*m+2+r}')
            for m in range(2):
                I(f'buffer_store_dwordx4 {rng("v", a+4*m, 4)}, v{vHS}, {rng("s", HS, 4)}, s{(sT0, sT1)[t]} offen offset:{64*m} sc1')
        silu(0, True)
        lab = p.uid('n1')
        I('s_cmp_ge_u32 s3, 6')
        I(f's_cbranch_scc1 {lab}')
        silu(1, False)
        p.L(lab)
    node_task(True)
    mark(7)
    I(f's_mov_b32 s{SV+2}, {N * 1024}')
    I(f's_mov_b32 s{HS+2}, {N * 256}')
    I(f'v_lshrrev_b32 v{vCP}, 3, v0')
    I(f'v_lshlrev_b32 v{vCP}, 15, v{vCP}')
    I('v_and_b32 v90, 7, v0')
    I(f'v_lshl_or_b32 v{vCP}, v90, 4, v{vCP}')
    I('s_lshl_b32 s4, s2, 7')
    I(f's_add_u32 s5, s4, {64 * 32768}')
    I(f'buffer_load_dwordx4 v[40:43], v{vCP}, {rng("s", CE, 4)}, s4 offen sc1')
    I(f'buffer_load_dwordx4 v[44:47], v{vCP}, {rng("s", CE, 4)}, s5 offen sc1')
    I('s_cmp_lg_u32 s3, 7')
    I('s_cbranch_scc1 k_nodp2')
    I(f'v_mov_b32 v90, {L_DPOS}')
    I(f'v_add_u32 v91, v90, v{vL16}')
    for h in range(2):
        g = vDP + 2 * h
        I(f'v_alignbit_b32 v93, v{g+1}, v{g}, v{vX+2}')
        I(f'v_lshrrev_b32 v94, v{vX+2}, v{g+1}')
        I('v_lshlrev_b32 v92, 16, v93')
        I('v_and_b32 v93, 0xffff0000, v93')
        I('v_lshlrev_b32 v94, 16, v94')
        I(f'v_mov_b32 v95, {L_CNT + 16 * h}')
        I(f'v_lshl_add_u32 v95, v{vKQ}, 2, v95')
        I(f'ds_write_b128 v91, v[92:95] offset:{1024*h}')
    for r in range(3): I(f'v_mov_b32 v{92+r}, {f32hex(1e18)}')
    I('v_add_u32 v90, -16, v90')
    I('ds_write_b128 v90, v[92:95]')
    p.L('k_nodp2')
    return dict(vWB=vWB, vWB2=vWB2, vWRB=vWRB, vCP=vCP, vSS=vSS, vI=vI, vKQ=vKQ, s_loads=s_loads, node_task=node_task)
```

```python
from asmlib import *
from consts import *
from maps import *

GR, GP, GSH = 148, 150, 154

class Loop:
    def __init__(s, p, mark, dbg):
        s.p = p; s.mark = mark; s.dbg = dbg
    def wait_tiles(s, sreg, cap):
        p = s.p; I = p.I
        done = p.uid('wt')
        for n in range(cap, 0, -1):
            nxt = p.uid('wn')
            I(f's_cmp_lt_u32 s{sreg}, {n}')
            I(f's_cbranch_scc1 {nxt}')
            I(f's_waitcnt vmcnt({8 * n})')
            I(f's_branch {done}')
            p.L(nxt)
        I('s_waitcnt vmcnt(0)')
        p.L(done)
    def base_dma(s, soff, lbase):
        p = s.p; I = p.I
        skip = p.uid('bd')
        for j in range(4):
            if j == 3:
                I('s_cmp_ge_u32 s3, 6')
                I(f's_cbranch_scc1 {skip}')
            if j == 0:
                I(f's_mov_b32 m0, s{lbase}')
                so = soff
            else:
                I(f's_add_u32 m0, s{lbase}, {j * 4 * RSTR}')
                I(f's_add_u32 s{sX}, s{soff}, {j * 4096}')
                so = sX
            I(f'buffer_load_dwordx4 v{vL16}, {rng("s", BASE, 4)}, s{so} offen lds')
        p.L(skip)
    def dma_list(s):
        L0 = [f'ds_read2_b32 v[{vT}:{vT+1}], v{vREC} offset0:0 offset1:4',
              f'v_add_u32 v{vREC}, 128, v{vREC}']
        L1 = [f'v_lshl_add_u32 v{vT+2}, v{vT}, 10, v{vDV0}',
              f'v_lshl_add_u32 v{vT+3}, v{vT}, 8, v{vDH0}',
              f'v_lshl_add_u32 v{vT+4}, v{vT+1}, 10, v{vDV1}',
              f'v_lshl_add_u32 v{vT+5}, v{vT+1}, 8, v{vDH1}']
        P = []
        for j in range(2):
            vo, vh = vT + 2 + 2 * j, vT + 3 + 2 * j
            b = j * 4096
            P.append([f's_add_u32 m0, s{sDSL}, {b + 3072}', f'buffer_load_dwordx4 v{vh}, {rng("s", HS, 4)}, 0 offen lds'])
            for c in range(3):
                m = (f's_mov_b32 m0, s{sDSL}' if b + 768 * c == 0 else f's_add_u32 m0, s{sDSL}, {b + 768*c}')
                off = f' offset:{256*c}' if c else ''
                P.append([m, f'buffer_load_dwordx4 v{vo}, {rng("s", SV, 4)}, 0 offen{off} lds'])
        T = [f's_add_u32 s{sDSL}, s{sDSL}, {SLOT}',
             f's_cmp_ge_u32 s{sDSL}, {NRING*SLOT}',
             f's_cselect_b32 s{sT0}, {NRING*SLOT}, 0',
             f's_sub_u32 s{sDSL}, s{sDSL}, s{sT0}']
        return L0, L1, P, T
    def pos_loads(s):
        p = s.p; I = p.I
        skip = p.uid('pl')
        I(f's_add_u32 s{sT0}, s{sGW2}, s{sQ}')
        I(f's_cmp_ge_u32 s{sT0}, s{sT}')
        I(f's_cbranch_scc1 {skip}')
        I(f's_lshl_b32 s{sT0}, s{sQ}, 7')
        I(f'v_add_u32 v40, s{sT0}, v{vGW}')
        I(f'ds_read_b32 v{GR}, v40 offset:{4 * PL}')
        I(f'v_and_b32 v41, 0xffffff, v{GR}')
        I(f'v_lshrrev_b32 v42, 28, v{GR}')
        I(f'v_lshrrev_b32 v{GR}, 24, v{GR}')
        I('v_lshlrev_b32 v42, 1, v42')
        I(f'v_sub_u32 v42, v{GR}, v42')
        I(f'v_add_u32 v42, s{sNB}, v42')
        I('v_mul_u32_u24 v43, 6, v41')
        I('v_mul_u32_u24 v44, 6, v42')
        I('v_and_b32 v43, -4, v43')
        I('v_and_b32 v44, -4, v44')
        I(f'buffer_load_dwordx2 v[{GP}:{GP+1}], v43, {rng("s", POS, 4)}, 0 offen')
        I(f'buffer_load_dwordx2 v[{GP+2}:{GP+3}], v44, {rng("s", POS, 4)}, 0 offen')
        I(f'v_lshlrev_b32 v{GSH}, 4, v41')
        I(f'v_lshlrev_b32 v{GSH+1}, 4, v42')
        p.L(skip)
    def geometry(s):
        p = s.p; I = p.I
        def rnd(d, x): I(f'v_cvt_pk_bf16_f32 v{d}, 0, v{x}')
        X = 40
        I(f's_cmp_lg_u32 s{RV}, 0')
        I('s_cbranch_scc1 k_gl')
        s.wait_tiles(sT1, 1)
        I(f's_add_u32 s{sT0}, s{sGW2}, s{sQ}')
        I(f's_cmp_ge_u32 s{sT0}, s{sT}')
        I('s_cbranch_scc1 k_gskip')
        for e in range(2):
            r = GP + 2 * e; sh = GSH + e; o = X + 3 * e
            I(f'v_alignbit_b32 v{X+6}, v{r+1}, v{r}, v{sh}')
            I(f'v_lshrrev_b32 v{X+7}, v{sh}, v{r+1}')
            I(f'v_lshlrev_b32 v{o}, 16, v{X+6}')
            I(f'v_and_b32 v{o+1}, 0xffff0000, v{X+6}')
            I(f'v_lshlrev_b32 v{o+2}, 16, v{X+7}')
        for c in range(3): I(f'v_sub_f32 v{X+c}, v{X+c}, v{X+3+c}')
        I('s_branch k_gc')
        p.L('k_gl')
        I(f's_cmp_ge_u32 s{sGW2}, s{sT}')
        I('s_cbranch_scc1 k_gskip')
        I(f'ds_read2st64_b32 v[{X}:{X+1}], v{vGW} offset0:0 offset1:{PL // 256}')
        I(f'ds_read2st64_b32 v[{X+2}:{X+3}], v{vGW} offset0:{2 * PL // 256} offset1:{4 * PL // 256}')
        I('s_waitcnt lgkmcnt(0)')
        I(f'v_lshrrev_b32 v{GR}, 24, v{X+3}')
        p.L('k_gc')
        for c in range(3): rnd(X + c, X + c)
        for c in range(3): I(f'v_mul_f32 v{X+3+c}, v{X+c}, v{X+c}')
        for c in range(3): rnd(X + 3 + c, X + 3 + c)
        D, RI, FC = X + 8, X + 9, X + 10
        I(f'v_add_f32 v{D}, v{X+3}, v{X+4}')
        I(f'v_add_f32 v{D}, v{D}, v{X+5}')
        rnd(D, D)
        I(f'v_add_f32 v{D}, {f32hex(1e-8)}, v{D}')
        rnd(D, D)
        I(f'v_sqrt_f32 v{D}, v{D}')
        I(f'ds_write_b16 v{vIW}, v{GR}')
        rnd(D, D)
        Y = 64
        I(f'v_rcp_f32 v{RI}, v{D}')
        I(f'v_mul_f32 v{FC}, {f32hex(3.141592653589793)}, v{D}')
        for q in range(16): I(f'v_mul_f32 v{Y+q}, s{FR+q}, v{D}')
        rnd(FC, FC)
        I(f'v_mul_f32 v{FC}, {f32hex(0.2)}, v{FC}')
        rnd(FC, FC)
        I(f'v_mul_f32 v{FC}, 0.15915494, v{FC}')
        I(f'v_cos_f32 v{FC}, v{FC}')
        for c in range(3): I(f'v_mul_f32 v{X+c}, v{X+c}, v{RI}')
        rnd(FC, FC)
        for c in range(3): rnd(X + c, X + c)
        for c in range(3): I(f'ds_write_b32 v{vGW}, v{X+c} offset:{PL*c}')
        I(f'v_add_f32 v{FC}, 1.0, v{FC}')
        rnd(FC, FC)
        I(f'v_cmp_gt_f32 vcc, {f32hex(5.0)}, v{D}')
        I(f'v_mul_f32 v{FC}, 0.5, v{FC}')
        for q in range(16): rnd(Y + q, Y + q)
        I(f'v_cndmask_b32 v{FC}, 0, v{FC}, vcc')
        I(f'v_mul_f32 v{RI}, v{RI}, v{FC}')
        for q in range(16): I(f'v_mul_f32 v{Y+q}, 0.15915494, v{Y+q}')
        for q in range(16): I(f'v_fract_f32 v{Y+q}, v{Y+q}')
        for q in range(16): I(f'v_sin_f32 v{Y+q}, v{Y+q}')
        for q in range(16): rnd(Y + q, Y + q)
        for q in range(16): I(f'v_mul_f32 v{Y+q}, v{Y+q}, v{RI}')
        for q in range(8): I(f'v_cvt_pk_bf16_f32 v{80+q}, v{Y+2*q}, v{Y+2*q+1}')
        I(f'ds_write2_b64 v{vRW}, v[80:81], v[82:83] offset0:0 offset1:32')
        I(f'ds_write2_b64 v{vRW}, v[84:85], v[86:87] offset0:64 offset1:96')
        p.L('k_gskip')
    def masks(s):
        a = [f'v_xor_b32 v{S+j}, v{ID+j}, v{vNID}' for j in range(4)]
        a += [f'v_pk_sub_u16 v{S+j}, s{sONES}, v{S+j} clamp' for j in range(4)]
        a += [f'v_pk_mul_lo_u16 v{S+j}, s{sBF1}, v{S+j}' for j in range(4)]
        return a
    def seg(s, comp):
        a = PS if comp == 0 else RH + 8 * (comp - 1)
        acc = rng('v', ACC + 4 * comp, 4)
        return m32(acc, rng('v', a, 4), rng('v', S, 4), acc)

    def body(s):
        p = s.p; I = p.I; mark = s.mark; dbg = s.dbg; seg = s.seg
        I(f's_mov_b32 s{sQ}, 0')
        I(f's_cmp_lg_u32 s{RV}, 0')
        I('s_cbranch_scc1 k_nopl')
        s.pos_loads()
        p.L('k_nopl')
        def pre(n, lab):
            I(f's_and_b32 s{sT1}, s{sT}, s{ROLE}')
            I(f's_cmp_le_u32 s{sT1}, {n}')
            I(f's_cbranch_scc1 {lab}')
            L0, L1, P, T = s.dma_list()
            for x in L0 + L1: I(x)
            for pc in P:
                for x in pc: I(x)
            for x in T: I(x)
        pre(0, 'k_pre1')
        p.L('k_pre1')
        for r in range(16): I(f'v_mov_b32 v{ACC+r}, 0')
        I(f's_and_b32 s{sT1}, s{sT}, s{ROLE}')
        I('s_branch k_geo')
        p.L('k_reset')
        for x in s.masks(): I(x)
        for comp in (1, 2, 3, 0): I(seg(comp))
        I('s_branch k_setdone')
        p.L('k_ginit')
        I(f's_cmp_eq_u32 s{sE0}, s{sEP}')
        I('s_cbranch_scc1 k_adv')
        I(f's_cmp_lt_u32 s{sEP}, s{sLIM}')
        I('s_cbranch_scc1 k_reset')
        p.L('k_tile_next')
        I(f's_add_u32 s{sI}, s{sI}, 1')
        I(f's_add_u32 s{sLIM}, s{sLIM}, 32')
        I(f's_and_b32 s{sT0}, s{sI}, {CH - 1}')
        I('s_cbranch_scc1 k_tile')
        I(f's_cmp_eq_u32 s{sI}, 0')
        I('s_cbranch_scc1 k_tile')
        I('s_waitcnt lgkmcnt(0)')
        I('s_barrier')
        I(f's_mov_b32 s{sQ}, s{sI}')
        I(f's_mov_b32 s{RV}, 0')
        s.pos_loads()
        I(f's_mov_b32 s{sT1}, 0')
        p.L('k_geo')
        mark(16)
        s.geometry()
        mark(17)
        I(f'v_mov_b32 v{vRB}, v{vRB0}')
        I(f'v_mov_b32 v{vGE}, v{vGE0}')
        I(f's_cmp_ge_i32 s{sI}, 0')
        I('s_cbranch_scc1 k_geo2')
        I('s_cmp_lt_u32 s3, 4')
        I('s_cbranch_scc1 k_geo1')
        I(f's_cmp_eq_u32 s{sPASS}, 0')
        I('s_cbranch_scc1 k_geo0')
        I('s_waitcnt vmcnt(0)')
        I('buffer_inv sc1')
        p.L('k_geo0')
        I(f's_add_u32 s{sT0}, s{sROW0}, {GN * 1024}')
        I(f's_add_u32 s{sT1}, s{sSTW}, {STGB}')
        s.base_dma(sROW0, sSTW)
        s.base_dma(sT0, sT1)
        p.L('k_geo1')
        I('s_waitcnt lgkmcnt(0)')
        I('s_barrier')
        pre(1, 'k_ginit')
        I('s_branch k_ginit')
        p.L('k_geo2')
        I('s_waitcnt lgkmcnt(0)')
        I('s_barrier')
        p.L('k_tile')
        mark(18)
        I(f'v_add_u32 v{vRB}, 1024, v{vRB}')
        I(f'v_add_u32 v{vGE}, 128, v{vGE}')
        I(f'ds_read_b128 {rng("a", aR, 4)}, v{vRB}')
        I(f'ds_read_b128 {rng("v", ID, 4)}, v{vGE} offset:{3 * PL}')
        L0, L1, P, T = s.dma_list()
        for x in L0: I(x)
        for c in range(3):
            for eb in range(2):
                I(f'ds_read_b128 {rng("v", RH + 8*c + 4*eb, 4)}, v{vGE} offset:{PL*c + 64*eb}')
        I(f's_add_u32 s{sRSL}, s{sRSL}, {SLOT}')
        I(f's_cmp_ge_u32 s{sRSL}, {NRING*SLOT}')
        I(f's_cselect_b32 s{sRSL}, 0, s{sRSL}')
        for ks in range(4): I(f'v_add_u32 v{vHA+ks}, s{sRSL}, v{vHB+ks}')
        I(f'v_add_u32 v{vVA}, s{sRSL}, v{vVB}')
        I(f's_sub_u32 s{sT1}, s{sT}, s{sI}')
        I(f's_cmp_gt_u32 s{sT1}, 2')
        I(f's_cselect_b64 vcc, s[{ROLE}:{ROLE+1}], 0')
        I(f's_sub_u32 s{sT1}, s{sT1}, 1')
        wf = []
        for G, W in ((2, WVR), (1, WVV), (0, WSS)):
            for eb in range(2):
                wf.append(m16(rng('v', W + 4 * eb, 4), rng('a', aR + 2 * eb, 2), rng('a', aWR(G), 2), '0'))
        weave(I, wf, s.masks() + L1, 3)
        I('s_cmp_ge_u32 s3, 4')
        I('s_cbranch_scc1 k_b1')
        s.wait_tiles(sT1, 1)
        p.L('k_b1')
        I('s_barrier')
        mark(19)
        for ks in range(4):
            for eb in range(2):
                I(f'ds_read_b128 {rng("a", aH + 4*(4*eb+ks), 4)}, v{vHA+ks} offset:{16384*eb}')
        for c in range(3):
            for eb in range(2):
                I(f'ds_read_b64_tr_b16 {rng("v", VP + 4*c + 2*eb, 2)}, v{vVA} offset:{16384*eb + 1024*c}')
        def pm(G, Pd):
            ms = []
            for ks in range(4):
                for eb in range(2):
                    d = rng('v', Pd + 4 * eb, 4)
                    ms.append(m32(d, rng('a', aH + 4 * (4 * eb + ks), 4), rng('a', aW(G, ks), 4), '0' if ks == 0 else d))
            return ms
        for m in pm(2, PVR): I(m)
        def site(k):
            def f():
                lab = p.uid('ds')
                I(f's_cbranch_vccz {lab}')
                for pc in P[2*k:2*k+2]:
                    for x in pc: I(x)
                if k == 3:
                    for x in T: I(x)
                p.L(lab)
            return f
        unp = []
        for j in range(12):
            unp.append(f'v_lshlrev_b32 v{VL+j}, 16, v{VP+j}')
            unp.append(f'v_and_b32 v{VP+j}, 0xffff0000, v{VP+j}')
        mvr = [f'v_mul_f32 v{PVR+k}, v{PVR+k}, v{WVR+k}' for k in range(8)]
        rhm = [f'v_mul_f32 v{RH+8*c+k}, v{RH+8*c+k}, v{PVR+k}' for c in range(3) for k in range(8)]
        f1 = [site(0)] + unp[:12] + [site(1)] + unp[12:] + mvr + [site(2)] + rhm[:12]
        weave(I, pm(1, PVV), f1, 6)
        mvv = [f'v_mul_f32 v{PVV+k}, v{PVV+k}, v{WVV+k}' for k in range(8)]
        fm = []
        for c in range(3):
            for k in range(8):
                j = 4 * c + (k >> 1)
                src = VL + j if (k & 1) == 0 else VP + j
                fm.append(f'v_fmac_f32 v{RH+8*c+k}, v{PVV+k}, v{src}')
            for j in range(4):
                fm.append(f'v_cvt_pk_bf16_f32 v{RH+8*c+j}, v{RH+8*c+2*j}, v{RH+8*c+2*j+1}')
        f2 = [site(3)] + rhm[12:] + mvv + fm[:24]
        weave(I, pm(0, PS), f2, 6)
        I(seg(1))
        for x in fm[24:30]: I(x)
        I(seg(2))
        for x in fm[30:]: I(x)
        for k in range(8): I(f'v_mul_f32 v{PS+k}, v{PS+k}, v{WSS+k}')
        I(seg(3))
        for j in range(4): I(f'v_cvt_pk_bf16_f32 v{PS+j}, v{PS+2*j}, v{PS+2*j+1}')
        I(seg(0))
        p.L('k_setdone')
        mark(20)
        I(f's_cmp_gt_u32 s{sE0}, s{sLIM}')
        I('s_cbranch_scc1 k_tile_next')
        p.L('k_adv')
        I(f'v_add_u32 v{vT}, s{sBUF}, v{vSTA}')
        I(f'v_add_u32 v{vT+1}, s{sBUF}, v{vSTR}')
        I('s_cmp_lt_u32 s3, 4')
        I('s_cbranch_scc1 k_e1b')
        I(f's_add_u32 s{sT0}, s{sG}, -1')
        I(f's_cmp_lt_u32 s{sT0}, {NG - 2}')
        I('s_cbranch_scc1 k_w6')
        I('s_waitcnt vmcnt(3)')
        p.L('k_w6')
        I('s_waitcnt vmcnt(6)')
        p.L('k_e1b')
        I('s_barrier')
        for comp in range(4):
            I(f'ds_read_b64 {rng("v", WVR + 2*comp, 2)}, v{vT} offset:{256*comp}')
        I(f's_add_u32 s{sG}, s{sG}, 1')
        I(f's_mov_b32 s{sEP}, s{sE0}')
        I(f'v_add_u32 v{vNID}, {16 | (16 << 16)}, v{vNID}')
        I(f'v_readlane_b32 s{sE0}, v{vENDS}, s{sG}')
        for comp in range(4):
            acc = rng('v', ACC + 4 * comp, 4)
            I(m16(acc, rng('a', aI, 2), rng('v', WVR + 2 * comp, 2), acc))
        I(f's_mov_b64 exec, s[{XM}:{XM+1}]')
        for comp in range(4):
            a = ACC + 4 * comp
            I(f'v_cvt_pk_bf16_f32 v{WVV+2*comp}, v{a}, v{a+1}')
            I(f'v_cvt_pk_bf16_f32 v{WVV+2*comp+1}, v{a+2}, v{a+3}')
            I(f'ds_write_b64 v{vT}, {rng("v", WVV + 2*comp, 2)} offset:{256*comp}')
        I('s_mov_b64 exec, -1')
        for r in range(16): I(f'v_mov_b32 v{ACC+r}, 0')
        I('s_waitcnt lgkmcnt(0)')
        I('s_barrier')
        I('s_cmp_lt_u32 s3, 4')
        I('s_cbranch_scc1 k_adv_done')
        for j in range(4):
            I(f'ds_read_b128 {rng("v", WVR + 4*j, 4)}, v{vT+1} offset:{j * 4 * RSTR}')
        for j in range(4):
            if j == 3:
                I('s_cmp_ge_u32 s3, 6')
                I('s_cbranch_scc1 k_st3')
            so = sROW
            if j:
                I(f's_add_u32 s{sX}, s{sROW}, {j * 4096}')
                so = sX
            I(f'buffer_store_dwordx4 {rng("v", WVR + 4*j, 4)}, v{vL16}, {rng("s", OUT, 4)}, s{so} offen')
        p.L('k_st3')
        I('s_waitcnt lgkmcnt(0)')
        I(f's_cmp_ge_u32 s{sG}, {NG - 1}')
        I('s_cbranch_scc1 k_adv_done')
        I(f's_add_u32 s{sT0}, s{sROW}, {2 * GN * 1024}')
        I(f's_add_u32 s{sT1}, s{sSTW}, s{sBUF}')
        s.base_dma(sT0, sT1)
        p.L('k_adv_done')
        mark(21)
        I(f's_add_u32 s{sROW}, s{sROW}, {GN * 1024}')
        I(f's_sub_u32 s{sBUF}, {STGB}, s{sBUF}')
        I(f's_cmp_lt_u32 s{sG}, {NG}')
        I('s_cbranch_scc1 k_ginit')
        if dbg:
            mark(22)
            I('s_waitcnt vmcnt(0)')
            mark(23)
            mark(31, True)
            srd(p, CE, 26, 27, 1 << 20, add=WS_PROF)
            I('s_lshl_b32 s4, s2, 3')
            I('s_add_u32 s4, s4, s3')
            I('s_lshl_b32 s4, s4, 8')
            I(f'v_lshlrev_b32 v40, 2, v{vL}')
            I(f'buffer_store_dword v39, v40, {rng("s", CE, 4)}, s4 offen')
            I('s_branch k_exit')
        s.rescan()

    def rescan(s):
        p = s.p; I = p.I
        I(f's_cmp_eq_u32 s{sOVF}, 0')
        I('s_cbranch_scc1 k_exit')
        I(f's_cmp_lg_u32 s{sPASS}, 0')
        I('s_cbranch_scc1 k_ovf_next')
        I(f's_mov_b32 s{sPASS}, 1')
        I(f's_mov_b32 s{sP}, -1')
        I(f's_mov_b32 s{sBLK}, 0')
        srd(p, BASE, 24, 25, N * 1024)
        p.L('k_ovf_next')
        I(f's_cmp_lg_u32 s{sBLK}, 0')
        I('s_cbranch_scc1 k_ovf_blk')
        I(f's_add_u32 s{sP}, s{sP}, 1')
        I(f's_cmp_ge_u32 s{sP}, {NPE}')
        I('s_cbranch_scc1 k_exit')
        I(f's_lshl_b32 s{sT0}, s{sP}, 2')
        I(f's_add_u32 s{sT0}, s{sT0}, {L_OVF}')
        I(f'v_mov_b32 v40, s{sT0}')
        I('ds_read_b32 v40, v40')
        I('v_cmp_ne_u32 vcc, 0, v40')
        I('s_cbranch_vccz k_ovf_next')
        p.L('k_ovf_blk')
        I('s_load_dwordx4 s[72:75], s[0:1], 16')
        I('s_waitcnt lgkmcnt(0)')
        I('s_barrier')
        I(f'v_and_b32 v44, 15, v{vL}')
        I(f's_mov_b32 s7, {L_CNT}')
        I('v_lshl_add_u32 v45, v44, 2, s7')
        I('v_mov_b32 v46, 0')
        I('ds_write_b32 v45, v46')
        I(f's_mul_i32 s{sT0}, s{sP}, {ECH * 4}')
        I(f's_add_u32 s{sT1}, s{sT0}, {ECH * 4}')
        I(f's_add_u32 s{sT0}, s{sT0}, s{sBLK}')
        srd(p, 76, 72, 73, f's{sT1}')
        srd(p, 80, 74, 75, f's{sT1}')
        I('v_lshlrev_b32 v128, 4, v0')
        I(f'buffer_load_dwordx4 v[40:43], v128, s[76:79], s{sT0} offen')
        I(f'buffer_load_dwordx4 v[44:47], v128, s[80:83], s{sT0} offen')
        I(f's_sub_u32 s{sT1}, s{sT1}, s{sT0}')
        I(f's_xor_b32 s{sBLK}, s{sBLK}, 8192')
        I(f's_movk_i32 s{sT0}, 147')
        I(f's_mov_b32 s{sNL}, 2')
        I('s_waitcnt vmcnt(0) lgkmcnt(0)')
        I('s_barrier')
        for k in range(4):
            m = MK + 2 * k; X = XI(k)
            I(f'v_add_u32 v{X}, {4*k}, v128')
            I(f'v_cmp_gt_u32 s[72:73], s{sT1}, v{X}')
            I(f'v_subrev_u32 v{X}, s{sNB}, v{44+k}')
            I(f'v_cmp_gt_u32 vcc, {NP}, v{X}')
            I(f's_and_b64 s[{m}:{m+1}], s[72:73], vcc')
            I(f'v_mul_u32_u24 v{X+1}, s{sT0}, v{X}')
            I(f'v_bfe_u32 v{X+1}, v{X+1}, 11, 3')
            I(f'v_lshl_add_u32 v{X}, v{X+1}, 1, v{X}')
            I(f'v_lshl_or_b32 v{X+6}, v{X}, 24, v{40+k}')
            I(f'v_lshl_add_u32 v{X+3}, v{X+1}, 2, s7')
            I(f's_mov_b64 exec, s[{m}:{m+1}]')
            I(f'ds_add_rtn_u32 v{X+4}, v{X+3}, v{vONE}')
            I('s_mov_b64 exec, -1')
        I('s_branch k_bin')
```

```python
sP, sBLK = 4, 5
(sE0, sEP, sT, sI, sLIM, sG, sDSL, sRSL, sROW, sBUF) = range(8, 18)
RV = 18; sQ = 20; sNL = 21
SV, POS, OUT, HS, BASE = 28, 32, 36, 40, 44
dT, dI, dM = 48, 50, 51
CE = 52; FRR = 56; FR = 64; MK = 64
XM = 84; ROLE = 86
(sOVF, sPASS, sT0, sT1, sSTW, sGW2, sNB, sONES, sBF1, sX, sROW0, sSTAMP, sLO, sNODE) = range(88, 102)
vL, vL16, vDV0, vDV1, vDH0, vDH1, vREC = range(1, 8)
vHB = 8; vVB = 12; vHA = 13; vVA = 17
vRB, vGE, vNID, vONE, vENDS, vSTA, vSTR, vGW, vIW, vRW = range(18, 28)
vT = 28
vRB0, vGE0, vREC0, vNID0 = 34, 35, 36, 37
PVR, PVV, PS = 40, 48, 56
WVR, WVV, WSS = 64, 72, 80
VP = 88; RH = 100; ID = 124; S = 128; ACC = 132; VL = 148
def aW(G, ks): return 16 * G + 4 * ks
def aWR(G): return 48 + 2 * G
aH = 56; aR = 88; aI = 92
def rng(k, a, n): return f'{k}[{a}:{a+n-1}]'
def m32(d, a, b, c): return f'v_mfma_f32_16x16x32_bf16 {d}, {a}, {b}, {c}'
def m16(d, a, b, c): return f'v_mfma_f32_16x16x16_bf16 {d}, {a}, {b}, {c}'
def srd(p, dst, lo, hi, size, add=0):
    if add:
        p.I(f's_add_u32 s{dst}, s{lo}, {add}')
        p.I(f's_addc_u32 s{dst+1}, s{hi}, 0')
    else:
        p.I(f's_mov_b32 s{dst}, s{lo}')
        p.I(f's_mov_b32 s{dst+1}, s{hi}')
    p.I(f's_mov_b32 s{dst+2}, {size}')
    p.I(f's_mov_b32 s{dst+3}, 0x00020000')
def weave(I, ms, fs, per):
    fs = list(fs)
    for m in ms:
        I(m)
        for _ in range(per):
            if fs:
                f = fs.pop(0)
                if callable(f): f()
                else: I(f)
    for f in fs:
        if callable(f): f()
        else: I(f)
def XI(k): return 48 + 8 * k
INST = [(j, s) for s in range(5) for j in range(2)]
```

```python
import sys
from consts import *
import k3
HDR = open('gather_scatter__molecular_angular_painn__graph.s.ref').read().split('; Override launch')[0]
def desc(name, nfv, acc, sg=102):
    return f'''.amdhsa_kernel {name}
  .amdhsa_next_free_vgpr {nfv}
  .amdhsa_next_free_sgpr {sg}
  .amdhsa_accum_offset {acc}
  .amdhsa_group_segment_fixed_size 0
  .amdhsa_kernarg_size 88
  .amdhsa_user_sgpr_count 2
  .amdhsa_user_sgpr_kernarg_segment_ptr 1
  .amdhsa_system_sgpr_workgroup_id_x 1
.end_amdhsa_kernel
'''
def build(path, dbg=0, **kw):
    n = 'painn_fused_kernel'
    o = HDR
    o += f'; @launch kernel={n} grid=({NCONS},1,1) block=(512,1,1) lds={LDS}\n'
    o += '.amdgcn_target "amdgcn-amd-amdhsa--gfx950"\n.text\n'
    o += f'.globl {n}\n.p2align 8\n.type {n},@function\n'
    o += k3.gen(n, dbg, **kw).text()
    o += '.section .rodata,"a"\n.p2align 6\n' + desc(n, 256, 160)
    open(path, 'w').write(o)
if __name__ == '__main__':
    kw = dict(a.split('=') for a in sys.argv[3:])
    build(sys.argv[1] if len(sys.argv) > 1 else 'gather_scatter__molecular_angular_painn__graph.s', int(sys.argv[2]) if len(sys.argv) > 2 else 0, **{k: int(v) for k, v in kw.items()})
```
